```python
import torch

def _softmax(x, axis=-1):
    return torch.softmax(x, dim=axis)

def _gelu(x):
    return torch.nn.functional.gelu(x, approximate='tanh')

def _silu(x):
    return torch.nn.functional.silu(x)

def _sigmoid(x):
    return torch.sigmoid(x)

def _layernorm(x, axis=-1, eps=1e-05):
    m = x.mean(dim=axis, keepdim=True)
    v = x.var(dim=axis, keepdim=True, unbiased=False)
    return (x - m) / torch.sqrt(v + eps)

def _scatter_add(tgt, idx, src, axis=0):
    return tgt.clone().index_add_(axis, idx, src)

def _segment_sum(src, seg, n):
    out = torch.zeros((n,) + src.shape[1:], dtype=src.dtype)
    return out.index_add_(0, seg, src)

def _pad(x, pw):
    flat = tuple((v for pair in reversed(pw) for v in pair))
    return torch.nn.functional.pad(x, flat)
kernel_name = 'adaLN_cond__gqa_block_cached__dense_activation_squared_relu__decode'

def setup_inputs():

    _w = lambda a: (lambda t: t.to(torch.bfloat16) if t.is_floating_point() else t)(torch.as_tensor(a))

    def _A_setup():
        B, Sq, D = (2, 1, 576)
        Hq, Hkv, Sk, Dh = (32, 16, 8192, 128)
        assert Hq % Hkv == 0, (Hq, Hkv)
        return {'x': _w((lambda *s: torch.randn(*s, dtype=torch.bfloat16) * 0.05)(B, Sq, D)), 'k_cache': _w((lambda *s: torch.randn(*s, dtype=torch.bfloat16) * 3.2)(B, Hkv, Sk, Dh)), 'v_cache': _w((lambda *s: torch.randn(*s, dtype=torch.bfloat16) * 0.4)(B, Hkv, Sk, Dh)), 'wq': _w((lambda *s: torch.randn(*s, dtype=torch.bfloat16) * 3.2)(D, Hq * Dh) * D ** (-0.5)), 'wo': _w((lambda *s: torch.randn(*s, dtype=torch.bfloat16) * 0.4)(Hq * Dh, D) * (Hq * Dh) ** (-0.5))}
    _A_in = _A_setup()

    def _B_setup():
        B, S, D, F = (2, 1, 576, 4608)
        return {'x': _w((lambda *s: torch.randn(*s, dtype=torch.bfloat16) * 0.05)(B, S, D)), 'w1': _w((lambda *s: torch.randn(*s, dtype=torch.bfloat16) * 0.05)(D, F)), 'b1': _w((lambda *s: torch.randn(*s, dtype=torch.bfloat16) * 0.4)(F)), 'w2': _w((lambda *s: torch.randn(*s, dtype=torch.bfloat16) * 0.05)(F, D)), 'b2': _w((lambda *s: torch.randn(*s, dtype=torch.bfloat16) * 3.2)(D))}
    _B_in = _B_setup()
    return {'A_x': _A_in['x'], 'A_k_cache': _A_in['k_cache'], 'A_v_cache': _A_in['v_cache'], 'A_wq': _A_in['wq'], 'A_wo': _A_in['wo'], 'B_x': _B_in['x'], 'B_w1': _B_in['w1'], 'B_b1': _B_in['b1'], 'B_w2': _B_in['w2'], 'B_b2': _B_in['b2'], 'c': _w((lambda *s: torch.randn(*s, dtype=torch.bfloat16) * 0.1)(2, 576) * 8.0), 'w_mod': _w((lambda *s: torch.randn(*s, dtype=torch.bfloat16) * 0.1)(576, 6 * 576) * 576 ** (-0.5) * 8.0)}

def reference(A_x, A_k_cache, A_v_cache, A_wq, A_wo, B_x, B_w1, B_b1, B_w2, B_b2, c, w_mod):

    def _A_ref(x, k_cache, v_cache, wq, wo):
        B, Sq, D = x.shape
        Hq, Dh = (32, 128)
        Hkv = k_cache.shape[1]
        rep = Hq // Hkv
        q = (lambda x, *d: x.permute(*d))((x @ wq).reshape(B, Sq, Hq, Dh), 0, 2, 1, 3)
        k = (lambda x, n, axis: torch.repeat_interleave(x, n, dim=axis))(k_cache, rep, axis=1)
        v = (lambda x, n, axis: torch.repeat_interleave(x, n, dim=axis))(v_cache, rep, axis=1)
        scores = torch.einsum('bhqd,bhkd->bhqk', q, k) * Dh ** (-0.5)
        p = _softmax(scores, axis=-1)
        o = torch.einsum('bhqk,bhkd->bhqd', p, v)
        return (lambda x, *d: x.permute(*d))(o, 0, 2, 1, 3).reshape(B, Sq, Hq * Dh) @ wo

    def _B_ref(x, w1, b1, w2, b2):
        h = torch.einsum('bsd,df->bsf', x, w1) + b1
        zero = torch.zeros_like(h)
        r = torch.where(h > zero, h, zero)
        h = r * r
        out = torch.einsum('bsf,fd->bsd', h, w2) + b2
        return out
    x = A_x
    mod = (_silu(c) @ w_mod).reshape(c.shape[0], 6, 1, -1)
    sa, ca, ga, sb, cb, gb = (mod[:, 0].clone(), mod[:, 1].clone(), mod[:, 2].clone(), mod[:, 3].clone(), mod[:, 4].clone(), mod[:, 5].clone())
    h = _layernorm(x, axis=-1) * (1 + ca) + sa
    x = x + ga * _A_ref(h, A_k_cache, A_v_cache, A_wq, A_wo)
    h = _layernorm(x, axis=-1) * (1 + cb) + sb
    x = x + gb * _B_ref(h, B_w1, B_b1, B_w2, B_b2)
    return x
```

```python
import re
NAME = 'adaLN_cond__gqa_block_cached__dense_activation_squared_relu__decode'
HEADER = open('cdna_kernels/' + NAME + '.s.ref').read().split('; Override launch')[0]

KA = dict(x=0, k=8, v=16, wq=24, wo=32, bx=40, w1=48, b1=56, w2=64, b2=72, c=80, wmod=88, out=96, dbg=104, ws=112)
SZ = dict(x=2304, k=67108864, v=67108864, wq=576*4096*2, wo=4096*576*2, w1=576*4608*2, b1=4608*2, w2=4608*576*2,
          b2=1152, c=2304, wmod=576*3456*2, out=2304, dbg=256, ws=268435456)

_reg_re = re.compile(r'^-?\|?(?:abs\()?([vsa])(?:(\d+)|\[(\d+):(\d+)\])\)?\|?$')
def regs_of(op):
    op = op.strip()
    if op == 'vcc': return [('s', 106), ('s', 107)]
    if op == 'exec': return [('s', 126), ('s', 127)]
    if op == 'm0': return [('s', 124)]
    m = _reg_re.match(op)
    if not m: return []
    k = m.group(1)
    if m.group(2) is not None: return [(k, int(m.group(2)))]
    return [(k, i) for i in range(int(m.group(3)), int(m.group(4)) + 1)]

TRANS = ('v_exp_f32', 'v_log_f32', 'v_rcp_f32', 'v_rsq_f32', 'v_sqrt_f32', 'v_sin_f32', 'v_cos_f32')

class Ins:
    def __init__(self, text):
        self.text = text
        t = text.split(';')[0].strip()
        parts = t.split(None, 1)
        self.mn = parts[0]
        rest = parts[1] if len(parts) > 1 else ''
        ops = []; cur = ''; depth = 0
        for ch in rest:
            if ch == '[': depth += 1
            if ch == ']': depth -= 1
            if ch == ',' and depth == 0: ops.append(cur.strip()); cur = ''
            else: cur += ch
        if cur.strip(): ops.append(cur.strip())
        self.mods = ''
        if ops:
            lp = ops[-1].split(None, 1)
            ops[-1] = lp[0]
            self.mods = lp[1] if len(lp) > 1 else ''
        self.ops = ops
        mn = self.mn
        self.kind = 'other'
        self.wr = []; self.rd = []
        R = lambda i: regs_of(ops[i]) if i < len(ops) else []
        allr = lambda k: [r for i in range(k, len(ops)) for r in R(i)]
        self.dpp = mn.endswith('_dpp')
        self.states = 1
        if mn == 's_nop':
            self.states = int(ops[0], 0) + 1; self.kind = 'nop'
        elif mn.startswith('v_mfma'):
            self.kind = 'mfma'; self.wr = R(0); self.rd = allr(1); self.ab = R(1) + R(2); self.c = R(3)
        elif mn.startswith('v_'):
            self.kind = 'valu'
            if mn.startswith('v_permlane') and 'swap' in mn:
                self.wr = R(0) + R(1); self.rd = R(0) + R(1)
            elif mn.startswith('v_add_co') or mn.startswith('v_sub_co') or mn.startswith('v_addc_co') or mn.startswith('v_div_scale'):
                self.wr = R(0) + R(1); self.rd = allr(2)
            else:
                self.wr = R(0); self.rd = allr(1)
                if mn.startswith('v_fmac') or mn.startswith('v_writelane') or self.dpp: self.rd = self.rd + R(0)
            if mn.startswith('v_cmpx'): self.wr = self.wr + regs_of('exec')
        elif mn.startswith('buffer_') or mn.startswith('global_'):
            self.kind = 'vmem'
            if mn.startswith('buffer_load'):
                if ' lds' in (' ' + self.mods): self.rd = allr(0)
                else: self.wr = R(0); self.rd = allr(1)
            elif mn.startswith('global_load'):
                self.wr = R(0); self.rd = allr(1)
            else:
                self.rd = allr(0)
                self.store_data = R(0) if mn.startswith('buffer_') else R(1)
        elif mn.startswith('ds_'):
            self.kind = 'ds'
            if mn.startswith('ds_read') or '_rtn' in mn or mn.startswith('ds_bpermute') or mn.startswith('ds_swizzle') or mn.startswith('ds_permute'):
                self.wr = R(0); self.rd = allr(1)
            else: self.rd = allr(0)
        elif mn.startswith('s_'):
            self.kind = 'salu'
            if mn.startswith('s_cmp') or mn.startswith('s_cbranch') or mn in ('s_branch', 's_waitcnt', 's_barrier', 's_endpgm', 's_sleep', 's_setprio', 's_bitcmp1_b32', 's_bitcmp0_b32'):
                self.rd = allr(0)
            else:
                self.wr = R(0); self.rd = allr(1)
        self.is_branch = mn.startswith('s_cbranch') or mn == 's_branch'

def need(p, c):
    n = 0
    pw = set(p.wr)
    if p.kind == 'valu':
        vw = set(r for r in pw if r[0] in 'va'); sw = set(r for r in pw if r[0] == 's')
        if c.kind == 'valu':
            if c.dpp and vw & set(regs_of(c.ops[1])): n = max(n, 2)
            if c.mn.startswith('v_permlane') and vw & set(c.rd): n = max(n, 2)
            if (c.mn.startswith('v_readlane') or c.mn.startswith('v_readfirstlane')) and vw & set(c.rd): n = max(n, 1)
            if sw & set(c.rd):
                n = max(n, 4 if c.mn.startswith(('v_readlane', 'v_writelane')) else 2)
            if p.mn.startswith(TRANS) and vw & set(c.rd): n = max(n, 1)
            if ('s', 126) in sw: n = max(n, 5)
        if c.kind == 'mfma':
            if vw & set(c.rd): n = max(n, 2)
            if ('s', 126) in sw: n = max(n, 4)
        if c.kind == 'vmem' and sw & set(c.rd): n = max(n, 5)
        if c.kind in ('vmem', 'ds') and p.mn.startswith(TRANS) and vw & set(c.rd): n = max(n, 1)
    if p.kind == 'mfma':
        passes = 8 if '32x32' in p.mn else 4
        big = {4: 8, 8: 12}[passes]; ovl = {4: 6, 8: 10}[passes]; war = {4: 3, 8: 7}[passes]
        if c.kind == 'mfma':
            if pw & set(c.ab): n = max(n, big)
            if pw & set(c.c) and list(p.wr) != list(c.c): n = max(n, ovl)
            if pw & set(c.wr) and list(p.wr) != list(c.c): n = max(n, big)
        elif c.kind in ('valu', 'vmem', 'ds'):
            if pw & (set(c.rd) | set(c.wr)): n = max(n, big)
            if c.kind == 'valu' and set(p.c) & set(c.wr): n = max(n, war)
    if p.kind == 'vmem' and hasattr(p, 'store_data') and len(p.store_data) >= 3:
        if c.kind in ('valu', 'mfma', 'ds', 'vmem') and set(p.store_data) & set(c.wr): n = max(n, 2)
    if p.kind == 'salu' and ('s', 124) in pw and c.kind == 'vmem' and 'lds' in c.mods: n = max(n, 1)
    return n

def worst(p):
    if p.kind == 'mfma': return 12 if '32x32' in p.mn else 8
    if p.kind == 'valu':
        if any(r[0] == 's' for r in p.wr): return 5
        return 2
    if p.kind == 'vmem' and hasattr(p, 'store_data') and len(p.store_data) >= 3: return 2
    return 0

class Asm:
    def __init__(self):
        self.items = []
        self.nlabel = 0
    def __call__(self, s):
        for l in s.strip('\n').split('\n'):
            l = l.strip()
            if not l: continue
            if l.startswith(';'): self.items.append(('c', l)); continue
            if l.endswith(':'): self.items.append(('l', l[:-1])); continue
            self.items.append(('i', Ins(l)))
    def label(self, name): self.items.append(('l', name))
    def newlabel(self, p='L'):
        self.nlabel += 1
        return f'{p}_{self.nlabel}'
    def comment(self, s): self.items.append(('c', '; ' + s))
    def text(self):
        out = []; hist = []
        for k, it in self.items:
            if k == 'l': out.append(it + ':'); continue
            if k == 'c': out.append('    ' + it); continue
            d = 0; req = 0
            for p in reversed(hist):
                if d >= 14: break
                if it.is_branch: n = worst(p) - 1
                else: n = need(p, it)
                req = max(req, n - d)
                d += p.states
            if req > 0:
                nop = Ins(f's_nop {req-1}'); hist.append(nop); out.append(f'    s_nop {req-1}')
            hist.append(it); out.append('    ' + it.text)
            if it.mn in ('s_branch', 's_endpgm'): hist = []
            hist = hist[-16:]
        return '\n'.join(out) + '\n'

def vr(a, n=1): return f'v{a}' if n == 1 else f'v[{a}:{a+n-1}]'
def sr(a, n=1): return f's{a}' if n == 1 else f's[{a}:{a+n-1}]'

def kernel_desc(name, vgpr, sgpr, accum=None):
    if accum is None: accum = (vgpr + 3) // 4 * 4
    return f'''.p2align 6
.amdhsa_kernel {name}
  .amdhsa_next_free_vgpr {vgpr}
  .amdhsa_next_free_sgpr {sgpr}
  .amdhsa_accum_offset {accum}
  .amdhsa_group_segment_fixed_size 0
  .amdhsa_kernarg_size 120
  .amdhsa_user_sgpr_count 2
  .amdhsa_user_sgpr_kernarg_segment_ptr 1
  .amdhsa_system_sgpr_workgroup_id_x 1
  .amdhsa_float_denorm_mode_32 3
.end_amdhsa_kernel
'''

def build_file(kernels, launches):
    out = HEADER
    for (n, g, b, lds) in launches:
        if n is None: out += f'; @launch grid=({g},1,1) block=({b},1,1) lds={lds}\n'
        else: out += f'; @launch kernel={n} grid=({g},1,1) block=({b},1,1) lds={lds}\n'
    out += '.amdgcn_target "amdgcn-amd-amdhsa--gfx950"\n.text\n'
    for (n, a, vg, sg, ac) in kernels:
        out += f'.globl {n}\n.p2align 8\n.type {n},@function\n{n}:\n' + a.text()
    out += '.section .rodata,"a"\n'
    for (n, a, vg, sg, ac) in kernels:
        out += kernel_desc(n, vg, sg, ac)
    return out

def srd(a, d, ptr_s, size):
    a(f'''s_mov_b32 s{d}, s{ptr_s}
s_and_b32 s{d+1}, s{ptr_s+1}, 0xffff
s_mov_b32 s{d+2}, {size}
s_mov_b32 s{d+3}, 0x00020000''')
```

```python
import sys
from asmlib import *

WS_MOD = 0x00000
WS_Q   = 0x04000
WS_ML  = 0x08000
WS_OP  = 0x10000
WS_X1P = 0x50000
WS_YP  = 0x60000
WS_ST  = 0x200000
L_CNTA, L_CNTB, L_QF, L_MLF, L_CNTH, L_CNTO, L_CNTF, L_CNTV = 0, 4, 8, 12, 16, 20, 24, 28
L_GML = 0x40
L_MLW = 0x80
L_Q   = 0x200
L_OPL = 0x400
L_RED = 0x2400
L_AV  = 0x3400
L_STAT = 0x4400
L_FIN = 0x4480
L_X1  = 0x4800
L_TD  = 0x5A00
LDS_BYTES = 0x5E00

SPIN_LIMIT = 100000

class Cfg:
    nt = True
    stamps = False
    vsched = (1, 2, 3, 4, 8, 12, 16, 20, 24, 28)

def gen(cfg, fname):
    a = Asm()
    kn = NAME + '_kernel'
    NT = ' nt' if cfg.nt else ''
    PX, PK, PV, PWQ, PWO, PW1, PB1, PW2, PB2, PC, PWM, POUT, PDBG, PWS = 36, 38, 40, 42, 44, 48, 50, 52, 54, 56, 58, 60, 62, 64
    nst = [0]
    def stamp(i):
        if cfg.stamps: a(f's_memrealtime s[{84+2*i}:{85+2*i}]')
    def store_stamps(slot):
        if not cfg.stamps: return
        a('s_waitcnt lgkmcnt(0)')
        for i in range(8): a(f'v_mov_b32 v{2+i}, s{84+2*i}')
        a(f'''s_lshl_b32 s78, s2, 6
s_add_u32 s78, s78, {WS_ST + 32*slot}
v_mov_b32 v10, s78
s_mov_b64 exec, 1
buffer_store_dwordx4 v[2:5], v10, s[12:15], 0 offen
buffer_store_dwordx4 v[6:9], v10, s[12:15], 0 offen offset:16
s_mov_b64 exec, -1''')

    def lds_spin(off, target, vz, vt):
        L = a.newlabel('SP'); D = a.newlabel('SPD')
        a(f's_mov_b32 s80, 0')
        a.label(L)
        a(f'''ds_read_b32 v{vt}, v{vz} offset:{off}
s_waitcnt lgkmcnt(0)
v_readfirstlane_b32 s81, v{vt}
s_cmp_ge_u32 s81, {target}
s_cbranch_scc1 {D}
s_add_u32 s80, s80, 1
s_cmp_gt_u32 s80, {SPIN_LIMIT}
s_cbranch_scc1 {D}
s_sleep 1
s_branch {L}''')
        a.label(D)

    def lds_inc(off, vz, vt):
        a(f'''s_waitcnt lgkmcnt(0)
v_mov_b32 v{vt}, 1
s_mov_b64 exec, 1
ds_add_u32 v{vz}, v{vt} offset:{off}
s_mov_b64 exec, -1''')

    def lds_last(off, n, vz, vt, skip_label):
        a(f'''s_waitcnt lgkmcnt(0)
v_mov_b32 v{vt}, 1
s_mov_b64 exec, 1
ds_add_rtn_u32 v{vt}, v{vz}, v{vt} offset:{off}
s_mov_b64 exec, -1
s_waitcnt lgkmcnt(0)
v_readfirstlane_b32 s81, v{vt}
s_cmp_lg_u32 s81, {n-1}
s_cbranch_scc1 {skip_label}''')

    def poll(loads, vt, pre=None):
        L = a.newlabel('PL'); D = a.newlabel('PLD')
        a('s_mov_b32 s80, 0')
        a.label(L)
        for (dst, n, va, so, imm) in loads:
            op = {1: 'dword', 2: 'dwordx2', 4: 'dwordx4'}[n]
            a(f'buffer_load_{op} {vr(dst, n)}, v{va}, s[12:15], {so} offen offset:{imm} sc1')
        a('s_waitcnt vmcnt(0)')
        rs = [dst + i for (dst, n, va, so, imm) in loads for i in range(n)]
        if len(rs) == 1: a(f'v_mov_b32 v{vt}, v{rs[0]}'); rs = []
        elif len(rs) == 2: a(f'v_max_u32 v{vt}, v{rs[0]}, v{rs[1]}'); rs = []
        else: a(f'v_max3_u32 v{vt}, v{rs[0]}, v{rs[1]}, v{rs[2]}'); rs = rs[3:]
        while rs:
            if len(rs) >= 2: a(f'v_max3_u32 v{vt}, v{vt}, v{rs[0]}, v{rs[1]}'); rs = rs[2:]
            else: a(f'v_max_u32 v{vt}, v{vt}, v{rs[0]}'); rs = []
        a(f'''v_cmp_eq_u32 vcc, -1, v{vt}
s_cbranch_vccz {D}
s_add_u32 s80, s80, 1
s_cmp_gt_u32 s80, {SPIN_LIMIT}
s_cbranch_scc1 {D}
s_branch {L}''')
        a.label(D)

    def wait_arrival(lo, hi, vt, vt2):
        L = a.newlabel('AR'); D = a.newlabel('ARD')
        mask = ((1 << hi) - 1) ^ ((1 << lo) - 1)
        a(f'''s_mov_b32 s80, 0
v_lshlrev_b32 v{vt2}, 2, v1
s_mov_b32 s82, 0x01010101
s_mov_b32 s66, {mask & 0xffffffff}
s_mov_b32 s67, {mask >> 32}
s_mov_b64 exec, s[66:67]''')
        a.label(L)
        a(f'''buffer_load_dword v{vt}, v{vt2}, s[16:19], 0 offen sc1
s_waitcnt vmcnt(0)
v_cmp_ne_u32 vcc, s82, v{vt}
s_cbranch_vccz {D}
s_add_u32 s80, s80, 1
s_cmp_gt_u32 s80, {SPIN_LIMIT}
s_cbranch_scc1 {D}
s_sleep 4
s_branch {L}''')
        a.label(D)
        a('s_mov_b64 exec, -1')

    def transpose8(R, T):
        for d in range(4):
            for dd in range(4):
                a(f'v_perm_b32 v{T+4*(2*d)+dd}, v{R+4*(2*dd+1)+d}, v{R+4*(2*dd)+d}, s78')
                a(f'v_perm_b32 v{T+4*(2*d+1)+dd}, v{R+4*(2*dd+1)+d}, v{R+4*(2*dd)+d}, s79')
    def transpose4(R, T):
        for d in range(4):
            for dd in range(2):
                a(f'v_perm_b32 v{T+2*(2*d)+dd}, v{R+4*(2*dd+1)+d}, v{R+4*(2*dd)+d}, s78')
                a(f'v_perm_b32 v{T+2*(2*d+1)+dd}, v{R+4*(2*dd+1)+d}, v{R+4*(2*dd)+d}, s79')

    def rnd(regs, tmp):
        for i in range(0, len(regs), 2):
            if i + 1 < len(regs):
                a(f'''v_cvt_pk_bf16_f32 v{tmp}, v{regs[i]}, v{regs[i+1]}
v_lshlrev_b32 v{regs[i]}, 16, v{tmp}
v_and_b32 v{regs[i+1]}, 0xffff0000, v{tmp}''')
            else:
                a(f'''v_cvt_pk_bf16_f32 v{tmp}, v{regs[i]}, v{regs[i]}
v_lshlrev_b32 v{regs[i]}, 16, v{tmp}''')
    def unpack(src, dst):
        a(f'v_and_b32 v{dst+1}, 0xffff0000, v{src}')
        a(f'v_lshlrev_b32 v{dst}, 16, v{src}')

    def half_reduce(regs, tmps, op='v_add_f32'):
        for sh in (8, 4, 2, 1):
            for r in regs: a(f'{op}_dpp v{r}, v{r}, v{r} row_ror:{sh} row_mask:0xf bank_mask:0xf')
        for r, t in zip(regs, tmps): a(f'v_mov_b32 v{t}, v{r}')
        for r, t in zip(regs, tmps): a(f'v_permlane16_swap_b32 v{r}, v{t}')
        for r, t in zip(regs, tmps): a(f'{op} v{r}, v{r}, v{t}')

    a(f'''s_cmp_ge_u32 s2, 256
s_cbranch_scc1 L_end
s_load_dwordx16 s[36:51], s[0:1], 0
s_load_dwordx8 s[52:59], s[0:1], 64
s_load_dwordx4 s[60:63], s[0:1], 96
s_load_dwordx2 s[64:65], s[0:1], 112
v_lshrrev_b32 v2, 6, v0
v_and_b32 v1, 63, v0
v_readfirstlane_b32 s3, v2''')
    stamp(0)
    a('s_waitcnt lgkmcnt(0)')
    srd(a, 12, PWS, SZ['ws'])
    a('''s_cmp_ge_u32 s3, 8
s_cbranch_scc1 L_chain''')

    KB = lambda j: 40 + 4 * j
    VB = lambda j: 24 + 4 * j
    srd(a, 4, PK, SZ['k']); srd(a, 8, PV, SZ['v'])
    a('''s_and_b32 s70, s2, 31
s_lshl_b32 s70, s70, 21
s_lshr_b32 s71, s2, 5
s_lshl_b32 s71, s71, 18
s_add_u32 s70, s70, s71
s_lshl_b32 s71, s3, 15
s_add_u32 s70, s70, s71
v_and_b32 v2, 3, v1
v_lshlrev_b32 v2, 4, v2
v_bfe_u32 v3, v1, 2, 2
v_lshl_add_u32 v2, v3, 8, v2
v_lshrrev_b32 v3, 4, v1
v_lshl_add_u32 v2, v3, 6, v2
v_lshlrev_b32 v3, 4, v1''')
    for i in range(1, 8): a(f's_add_u32 s{70+i}, s70, {4096*i}')
    def kload(j): a(f'buffer_load_dwordx4 {vr(KB(j),4)}, v2, s[4:7], s{70+j//4} offen offset:{(j%4)*1024}{NT}')
    def vload(j): a(f'buffer_load_dwordx4 {vr(VB(j),4)}, v3, s[8:11], s{70+j//4} offen offset:{(j%4)*1024}{NT}')
    kload(0); kload(1)
    a('s_barrier')
    for j in range(2, 32): kload(j)
    for j in range(4): vload(j)
    stamp(1)
    a('''v_mov_b32 v0, 0
s_mov_b32 s82, 0x22222222
s_mov_b32 s83, 0x22222222
s_mov_b32 s66, 0x44444444
s_mov_b32 s67, 0x44444444
s_mov_b32 s68, 0x88888888
s_mov_b32 s69, 0x88888888''')
    a('''v_and_b32 v16, 3, v1
v_lshlrev_b32 v16, 4, v16
v_bfe_u32 v17, v1, 2, 1
v_lshl_add_u32 v16, v17, 8, v16
v_lshrrev_b32 v17, 4, v1
v_lshl_add_u32 v16, v17, 6, v16''')
    lds_spin(L_QF, 1, 0, 17)
    a(f'ds_read_b128 v[4:7], v16 offset:{L_Q}\ns_waitcnt lgkmcnt(0)')
    stamp(2)
    nv = 4
    masks = {1: 's[82:83]', 2: 's[66:67]', 3: 's[68:69]'}
    def qk_post(j):
        D = 16 + 4 * (j % 2); i, c = j // 4, j % 4
        T = 8 + i if c == 0 else 1
        a(f'v_mov_b32_dpp v{T}, v{D} quad_perm:[0,0,0,0] row_mask:0xf bank_mask:0xf')
        for t in (1, 2, 3): a(f'v_add_f32_dpp v{T}, v{D+t}, v{T} quad_perm:[{t},{t},{t},{t}] row_mask:0xf bank_mask:0xf')
        if c: a(f'v_cndmask_b32 v{8+i}, v{8+i}, v1, {masks[c]}')
    a('v_mov_b32 v0, v1')
    for j in range(32):
        a(f's_waitcnt vmcnt({31 - j + nv})')
        a(f'v_mfma_f32_16x16x32_bf16 {vr(16+4*(j%2),4)}, {vr(KB(j),4)}, v[4:7], 0')
        if j: qk_post(j - 1)
        if (j + 1) in cfg.vsched and nv < 32 and nv - 4 <= j:
            vload(nv); nv += 1
    qk_post(31)
    S = list(range(8, 16))
    rnd(S, 1)
    a('s_mov_b32 s82, 0x3db504f3')
    for r in S: a(f'v_mul_f32 v{r}, s82, v{r}')
    rnd(S, 1)
    a('''v_max3_f32 v16, v8, v9, v10
v_max3_f32 v17, v11, v12, v13
v_max3_f32 v16, v16, v14, v15
v_max_f32 v16, v16, v17
v_max_f32_dpp v16, v16, v16 quad_perm:[1,0,3,2] row_mask:0xf bank_mask:0xf
v_max_f32_dpp v16, v16, v16 quad_perm:[2,3,0,1] row_mask:0xf bank_mask:0xf
v_mov_b32 v17, v16
v_permlane16_swap_b32 v16, v17
v_max_f32 v16, v16, v17
v_mov_b32 v17, v16
v_permlane32_swap_b32 v16, v17
v_max_f32 v16, v16, v17
s_mov_b32 s83, 0x3fb8aa3b''')
    for i, r in enumerate(S):
        t = 18 + (i % 4)
        a(f'v_sub_f32 v{t}, v{r}, v16\nv_mul_f32 v{t}, s83, v{t}\nv_exp_f32 v{t}, v{t}')
        if i == 0: a(f'v_mov_b32 v17, v{t}')
        else: a(f'v_add_f32 v17, v17, v{t}')
    a('''v_add_f32_dpp v17, v17, v17 quad_perm:[1,0,3,2] row_mask:0xf bank_mask:0xf
v_add_f32_dpp v17, v17, v17 quad_perm:[2,3,0,1] row_mask:0xf bank_mask:0xf
v_mov_b32 v18, v17
v_permlane16_swap_b32 v17, v18
v_add_f32 v17, v17, v18
v_mov_b32 v18, v17
v_permlane32_swap_b32 v17, v18
v_add_f32 v17, v17, v18''')
    a(f'''v_lshlrev_b32 v18, 4, v0
s_lshl_b32 s81, s3, 3
v_add_u32 v18, s81, v18
v_mov_b32 v1, 0
s_mov_b64 exec, 0x11
ds_write_b64 v18, v[16:17] offset:{L_MLW}
s_mov_b64 exec, -1''')
    lds_inc(L_CNTA, 1, 19)
    stamp(3)
    while nv < 32: vload(nv); nv += 1
    lds_inc(L_CNTV, 1, 19)
    stamp(4)
    MR, AT, OA = 152, 156, 164
    a(f'''v_and_b32 v16, 3, v0
v_bfe_u32 v17, v0, 3, 1
v_lshl_add_u32 v16, v17, 2, v16
v_and_b32 v17, 1, v16
v_lshlrev_b32 v17, 4, v17
v_mov_b32 v18, 0xffff
v_lshlrev_b32 v17, v17, v18
v_lshrrev_b32 v16, 1, v16''')
    for r in range(4):
        a(f'v_cmp_eq_u32 vcc, {r}, v16\nv_cndmask_b32 v{MR+r}, 0, v17, vcc')
    for r in range(4): a(f'v_mov_b32 v{OA+r}, 0')
    a('v_bfe_u32 v18, v0, 2, 1\nv_lshlrev_b32 v18, 3, v18')
    lds_spin(L_MLF, 1, 1, 19)
    a(f'ds_read_b64 v[16:17], v18 offset:{L_GML}\ns_waitcnt lgkmcnt(0)')
    stamp(5)
    for r in S:
        a(f'v_sub_f32 v{r}, v{r}, v16\nv_mul_f32 v{r}, s83, v{r}')
    for r in S: a(f'v_exp_f32 v{r}, v{r}')
    for r in S: a(f'v_mul_f32 v{r}, v{r}, v17')
    for r in S: a(f'v_cvt_pk_bf16_f32 v{r}, v{r}, v{r}')
    def abuild(j):
        i, c = j // 4, j % 4
        for r in range(4):
            a(f'v_and_b32_dpp v{AT+4*(j%2)+r}, v{8+i}, v{MR+r} quad_perm:[{c},{c},{c},{c}] row_mask:0xf bank_mask:0xf')
    abuild(0)
    for j in range(32):
        if j + 1 < 32: abuild(j + 1)
        a(f's_waitcnt vmcnt({31 - j})')
        a(f'v_mfma_f32_16x16x32_bf16 {vr(OA,4)}, {vr(AT+4*(j%2),4)}, {vr(VB(j),4)}, {vr(OA,4)}')
    a(f'''v_and_b32 v16, 15, v0
v_lshlrev_b32 v16, 5, v16
v_bfe_u32 v17, v0, 4, 1
v_lshl_add_u32 v16, v17, 9, v16
v_lshrrev_b32 v17, 5, v0
v_lshl_add_u32 v16, v17, 4, v16
s_lshl_b32 s81, s3, 10
v_add_u32 v16, s81, v16
ds_write_b128 v16, {vr(OA,4)} offset:{L_OPL}''')
    lds_inc(L_CNTB, 1, 19)
    stamp(6)
    if cfg.stamps:
        a('s_cmp_lg_u32 s3, 0\ns_cbranch_scc1 L_end')
        stamp(7)
        store_stamps(1)
    a('s_endpgm')

    RAW, TR, RAW2, TR2, W2, W2X = 16, 48, 80, 96, 112, 80
    A, A2, PRM, PRM2 = 144, 148, 150, 158
    a.label('L_chain')
    a('''s_setprio 3
s_sub_u32 s3, s3, 8
s_mov_b32 s78, 0x05040100
s_mov_b32 s79, 0x07060302
v_mov_b32 v0, 0''')
    srd(a, 16, PDBG, 256)
    a('s_cmp_lg_u32 s3, 3\ns_cbranch_scc1 L_nopoison')
    for r in range(4): a(f'v_mov_b32 v{4+r}, -1')
    a(f'''v_lshlrev_b32 v2, 4, v1
s_and_b32 s70, s2, 31
s_lshl_b32 s70, s70, 3
s_lshr_b32 s71, s2, 5
s_add_u32 s70, s70, s71
s_lshl_b32 s71, s70, 10
s_add_u32 s71, s71, {WS_OP}
buffer_store_dwordx4 v[4:7], v2, s[12:15], s71 offen sc1
s_lshl_b32 s71, s70, 4
s_add_u32 s71, s71, {WS_ML}
s_mov_b64 exec, 1
buffer_store_dwordx4 v[4:7], v2, s[12:15], s71 offen sc1
s_mov_b64 exec, -1
s_cmp_ge_u32 s2, 128
s_cbranch_scc1 L_pz_m
v_and_b32 v3, 3, v1
v_lshlrev_b32 v3, 4, v3
v_bfe_u32 v8, v1, 2, 1
v_lshl_add_u32 v3, v8, 13, v3
s_lshl_b32 s71, s2, 6
s_add_u32 s71, s71, {WS_Q}
s_mov_b64 exec, 0xff
buffer_store_dwordx4 v[4:7], v3, s[12:15], s71 offen sc1
s_mov_b64 exec, -1
s_branch L_pz_t
L_pz_m:
s_cmp_ge_u32 s2, 236
s_cbranch_scc1 L_pz_t
s_sub_u32 s71, s2, 128
s_lshl_b32 s71, s71, 7
s_add_u32 s71, s71, {WS_MOD}
s_mov_b64 exec, 0xff
buffer_store_dwordx4 v[4:7], v2, s[12:15], s71 offen sc1
s_mov_b64 exec, -1
L_pz_t:
s_cmp_ge_u32 s2, 144
s_cbranch_scc1 L_pz_o
s_mul_i32 s71, s2, 4608
s_add_u32 s71, s71, {WS_YP}
buffer_store_dwordx4 v[4:7], v2, s[12:15], s71 offen sc1
buffer_store_dwordx4 v[4:7], v2, s[12:15], s71 offen offset:1024 sc1
buffer_store_dwordx4 v[4:7], v2, s[12:15], s71 offen offset:2048 sc1
buffer_store_dwordx4 v[4:7], v2, s[12:15], s71 offen offset:3072 sc1
s_add_u32 s71, s71, 4096
s_mov_b32 exec_hi, 0
buffer_store_dwordx4 v[4:7], v2, s[12:15], s71 offen sc1
s_mov_b64 exec, -1
s_branch L_pz_done
L_pz_o:
s_cmp_ge_u32 s2, 216
s_cbranch_scc1 L_pz_done
s_sub_u32 s71, s2, 144
s_mul_i32 s72, s71, 57
s_lshr_b32 s72, s72, 9
s_mul_i32 s73, s72, 9
s_sub_u32 s73, s71, s73
s_mul_i32 s71, s72, 4608
s_lshl_b32 s73, s73, 8
s_add_u32 s71, s71, s73
s_add_u32 s71, s71, {WS_X1P}
v_and_b32 v3, 15, v1
v_lshlrev_b32 v3, 4, v3
v_bfe_u32 v8, v1, 4, 1
v_mul_u32_u24 v8, 2304, v8
v_add_u32 v3, v3, v8
s_mov_b32 exec_hi, 0
buffer_store_dwordx4 v[4:7], v3, s[12:15], s71 offen sc1
s_mov_b64 exec, -1
L_pz_done:
s_waitcnt vmcnt(0)
v_mov_b32 v2, s2
v_mov_b32 v3, 1
s_mov_b64 exec, 1
buffer_store_byte v3, v2, s[16:19], 0 offen sc1
s_mov_b64 exec, -1
L_nopoison:''')
    a(f'''s_cmp_lg_u32 s3, 0
s_cbranch_scc1 L_noinit
v_lshlrev_b32 v2, 2, v1
ds_write_b32 v2, v0
s_waitcnt lgkmcnt(0)
L_noinit:''')
    a('''s_cmp_ge_u32 s2, 236
s_cbranch_scc1 L_nohead0
s_cmp_ge_u32 s2, 128
s_cbranch_scc1 L_hm0''')
    srd(a, 20, PWQ, SZ['wq']); srd(a, 28, PX, SZ['x'])
    a('s_mov_b32 s70, 8192\ns_mov_b32 s71, s2\ns_branch L_h1')
    a.label('L_hm0')
    srd(a, 20, PWM, SZ['wmod']); srd(a, 28, PC, SZ['c'])
    a('s_mov_b32 s70, 6912\ns_sub_u32 s71, s2, 128')
    a.label('L_h1')
    def narrow_loads(srdn, xwave):
        a(f'''v_lshrrev_b32 v14, 2, v1
v_and_b32 v2, 3, v1
v_lshlrev_b32 v2, 4, v2
v_mul_lo_u32 v3, v14, s70
v_lshl_add_u32 v4, v3, 3, v2
v_lshl_add_u32 v5, v3, 2, v2
s_lshl_b32 s72, s71, 6
s_lshl_b32 s73, s3, 7
s_mul_i32 s73, s73, s70
s_add_u32 s73, s73, s72''')
        for j in range(8):
            a(f'buffer_load_dwordx4 {vr(RAW+4*j,4)}, v4, s[{srdn}:{srdn+3}], s73 offen{NT}')
            if j < 7: a('s_add_u32 s73, s73, s70')
        X = a.newlabel('NX')
        a(f'''s_cmp_lg_u32 s3, {xwave}
s_cbranch_scc1 {X}
s_lshl_b32 s73, s70, 9
s_add_u32 s73, s73, s72''')
        for j in range(4):
            a(f'buffer_load_dwordx4 {vr(RAW2+4*j,4)}, v5, s[{srdn}:{srdn+3}], s73 offen{NT}')
            if j < 3: a('s_add_u32 s73, s73, s70')
        a.label(X)
    a(f'''v_lshrrev_b32 v14, 2, v1
v_and_b32 v2, 1, v1
v_mul_u32_u24 v2, 1152, v2
v_lshl_add_u32 v3, v14, 4, v2
s_lshl_b32 s72, s3, 8
buffer_load_dwordx4 {vr(A,4)}, v3, s[28:31], s72 offen
v_lshl_add_u32 v3, v14, 3, v2
buffer_load_dwordx2 {vr(A2,2)}, v3, s[28:31], 0 offen offset:1024''')
    XS = 150
    a(f'''s_cmp_ge_u32 s2, 128
s_cbranch_scc1 L_h2
v_lshrrev_b32 v2, 5, v1
v_mul_u32_u24 v2, 1152, v2
v_and_b32 v3, 31, v1
v_lshl_add_u32 v2, v3, 4, v2
buffer_load_dwordx4 {vr(XS,4)}, v2, s[28:31], 0 offen
buffer_load_dwordx4 {vr(XS+4,4)}, v2, s[28:31], 0 offen offset:512
v_mov_b32 v{XS+8}, 0
v_mov_b32 v{XS+9}, 0
v_mov_b32 v{XS+10}, 0
v_mov_b32 v{XS+11}, 0
s_mov_b32 exec_lo, 0xff
s_mov_b32 exec_hi, 0xff
buffer_load_dwordx4 {vr(XS+8,4)}, v2, s[28:31], 0 offen offset:1024
s_mov_b64 exec, -1
L_h2:''')
    narrow_loads(20, 1)
    a.label('L_nohead0')
    a('s_barrier')
    stamp(1)
    a('''s_cmp_ge_u32 s2, 236
s_cbranch_scc1 L_head_done
s_cmp_ge_u32 s2, 128
s_cbranch_scc0 L_hq''')
    a('s_waitcnt vmcnt(8)' )
    a('s_waitcnt vmcnt(0)')
    a('s_mov_b32 s82, 0xbfb8aa3b')
    def silu_pair(src):
        unpack(src, 2)
        a(f'''v_mul_f32 v4, s82, v2
v_mul_f32 v5, s82, v3
v_exp_f32 v4, v4
v_exp_f32 v5, v5
v_add_f32 v4, 1.0, v4
v_add_f32 v5, 1.0, v5
v_rcp_f32 v4, v4
v_rcp_f32 v5, v5
v_mul_f32 v2, v2, v4
v_mul_f32 v3, v3, v5
v_cvt_pk_bf16_f32 v{src}, v2, v3''')
    for r in range(A, A2 + 2): silu_pair(r)
    a('s_branch L_hgemv')
    a.label('L_hq')
    a('s_waitcnt vmcnt(0)')
    for i in range(12): unpack(XS + i, TR + 2 * i)
    a(f'v_add_f32 v2, v{TR}, v{TR+1}')
    for i in range(2, 24): a(f'v_add_f32 v2, v2, v{TR+i}')
    half_reduce([2], [3])
    a('s_mov_b32 s82, 0x3ae38e39')
    a('v_mul_f32 v2, s82, v2')
    a('v_and_b32 v4, 31, v1\nv_cmp_gt_u32 vcc, 8, v4')
    for i in range(24): a(f'v_sub_f32 v{TR+i}, v{TR+i}, v2')
    for i in range(16, 24): a(f'v_cndmask_b32 v{TR+i}, 0, v{TR+i}, vcc')
    a(f'v_mul_f32 v3, v{TR}, v{TR}')
    for i in range(1, 24): a(f'v_fmac_f32 v3, v{TR+i}, v{TR+i}')
    half_reduce([3], [4])
    a('v_mul_f32 v3, s82, v3')
    def ln_finish(mean, var, t):
        rnd([mean, var], t)
        a(f'v_add_f32 v{var}, 0x3727c5ac, v{var}')
        rnd([var], t)
        a(f'v_sqrt_f32 v{var}, v{var}')
        rnd([var], t)
        a(f'v_rcp_f32 v{var}, v{var}')
    ln_finish(2, 3, 4)
    a('''v_readlane_b32 s72, v2, 0
v_readlane_b32 s73, v2, 32
v_readlane_b32 s74, v3, 0
v_readlane_b32 s75, v3, 32
s_mov_b32 s66, 0xaaaaaaaa
s_mov_b32 s67, 0xaaaaaaaa
v_mov_b32 v12, s72
v_mov_b32 v13, s73
v_cndmask_b32 v12, v12, v13, s[66:67]
v_mov_b32 v13, s74
v_mov_b32 v2, s75
v_cndmask_b32 v13, v13, v2, s[66:67]''')
    for i in range(6): unpack(A + i, TR + 2 * i)
    for i in range(12): a(f'v_sub_f32 v{TR+i}, v{TR+i}, v12')
    rnd(list(range(TR, TR + 12)), 2)
    for i in range(12): a(f'v_mul_f32 v{TR+i}, v{TR+i}, v13')
    rnd(list(range(TR, TR + 12)), 2)
    wait_arrival(32, 41, 2, 3)
    MS = TR + 12
    MS = 112
    a(f'''v_lshlrev_b32 v4, 5, v14
v_lshlrev_b32 v5, 4, v14
s_lshl_b32 s72, s3, 9
s_add_u32 s72, s72, {WS_MOD}
s_add_u32 s73, s72, 2304
s_mov_b32 s74, {WS_MOD + 2048}
s_mov_b32 s75, {WS_MOD + 2304 + 2048}''')
    poll([(MS, 4, 4, 's72', 0), (MS + 4, 4, 4, 's72', 16), (MS + 8, 4, 4, 's73', 0), (MS + 12, 4, 4, 's73', 16),
          (MS + 16, 4, 5, 's74', 0), (MS + 20, 4, 5, 's75', 0)], 2)
    stamp(2)
    a('v_and_b32 v2, 1, v1\nv_lshlrev_b32 v2, 4, v2\nv_sub_u32 v2, 16, v2')
    for i in range(24):
        a(f'v_lshlrev_b32 v{MS+i}, v2, v{MS+i}\nv_and_b32 v{MS+i}, 0xffff0000, v{MS+i}')
    sa = [MS + i for i in range(8)] + [MS + 16 + i for i in range(4)]
    ca = [MS + 8 + i for i in range(8)] + [MS + 20 + i for i in range(4)]
    for r in ca: a(f'v_add_f32 v{r}, 1.0, v{r}')
    rnd(ca, 2)
    for i in range(12): a(f'v_mul_f32 v{TR+i}, v{TR+i}, v{ca[i]}')
    rnd(list(range(TR, TR + 12)), 2)
    for i in range(12): a(f'v_add_f32 v{TR+i}, v{TR+i}, v{sa[i]}')
    for i in range(6): a(f'v_cvt_pk_bf16_f32 v{A+i}, v{TR+2*i}, v{TR+2*i+1}')
    def narrow_mfma(xwave, do_transpose=True):
        X = a.newlabel('NG')
        if do_transpose:
            transpose8(RAW, TR)
        for e in range(8): a(f'v_mfma_f32_16x16x32_bf16 {vr(RAW+4*e,4)}, {vr(A,4)}, {vr(TR+4*e,4)}, 0')
        a(f's_cmp_lg_u32 s3, {xwave}\ns_cbranch_scc1 {X}')
        if do_transpose:
            transpose4(RAW2, TR2)
        for e in range(8): a(f'v_mfma_f32_16x16x16_bf16 {vr(RAW+4*e,4)}, {vr(A2,2)}, {vr(TR2+2*e,2)}, {vr(RAW+4*e,4)}')
        a.label(X)
        a(f'''v_lshrrev_b32 v2, 4, v1
v_and_b32 v3, 3, v1
v_lshlrev_b32 v3, 6, v3
v_lshl_add_u32 v2, v2, 8, v3
s_lshl_b32 s72, s3, 10
v_add_u32 v2, s72, v2
s_mov_b32 exec_lo, 0x00f0000f
s_mov_b32 exec_hi, 0xf0000f00''')
        for e in range(8): a(f'ds_write_b64 v2, {vr(RAW+4*e,2)} offset:{L_RED+8*e}')
        a('s_mov_b64 exec, -1')
    def narrow_sum(dst):
        a('v_lshlrev_b32 v2, 2, v1')
        for p in range(16): a(f'ds_read_b32 v{TR+p}, v2 offset:{L_RED+256*p}')
        a('s_waitcnt lgkmcnt(0)')
        for st in (1, 2, 4):
            for p in range(0, 16, 2 * st): a(f'v_add_f32 v{TR+p}, v{TR+p}, v{TR+p+st}')
        a(f'v_add_f32 v{dst}, v{TR}, v{TR+8}')
    a.label('L_hgemv')
    narrow_mfma(1)
    lds_last(L_CNTH, 4, 0, 2, 'L_head_done')
    narrow_sum(3)
    a(f'''s_cmp_ge_u32 s2, 128
s_cbranch_scc1 L_hs_m
v_mov_b32_dpp v4, v3 quad_perm:[2,3,0,1] row_mask:0xf bank_mask:0xf
v_cvt_pk_bf16_f32 v4, v3, v4
v_and_b32 v5, 1, v1
v_lshrrev_b32 v6, 2, v1
v_lshlrev_b32 v6, 2, v6
v_lshl_add_u32 v5, v5, 13, v6
s_lshl_b32 s72, s2, 6
s_add_u32 s72, s72, {WS_Q}
s_mov_b32 exec_lo, 0x33333333
s_mov_b32 exec_hi, 0x33333333
buffer_store_dword v4, v5, s[12:15], s72 offen sc1
s_mov_b64 exec, -1
s_branch L_head_done
L_hs_m:
v_mov_b32_dpp v4, v3 quad_perm:[1,0,3,2] row_mask:0xf bank_mask:0xf
v_cvt_pk_bf16_f32 v4, v3, v4
v_lshlrev_b32 v5, 1, v1
s_sub_u32 s72, s2, 128
s_lshl_b32 s72, s72, 7
s_add_u32 s72, s72, {WS_MOD}
s_mov_b32 exec_lo, 0x55555555
s_mov_b32 exec_hi, 0x55555555
buffer_store_dword v4, v5, s[12:15], s72 offen sc1
s_mov_b64 exec, -1''')
    a.label('L_head_done')
    stamp(3)
    a('s_cmp_lg_u32 s3, 0\ns_cbranch_scc1 L_c_mid')
    wait_arrival(0, 64, 2, 3)
    a(f'''v_lshlrev_b32 v4, 3, v1
s_and_b32 s72, s2, 15
s_lshl_b32 s72, s72, 9
s_bfe_u32 s73, s2, 0x10004
s_lshl_b32 s73, s73, 13
s_add_u32 s72, s72, s73
s_add_u32 s72, s72, {WS_Q}''')
    poll([(6, 2, 4, 's72', 0)], 2)
    a(f'ds_write_b64 v4, v[6:7] offset:{L_Q}')
    lds_inc(L_QF, 0, 2)
    stamp(4)
    lds_spin(L_CNTA, 8, 0, 2)
    def ml_combine():
        a('''v_max_f32_dpp v8, v6, v6 quad_perm:[1,0,3,2] row_mask:0xf bank_mask:0xf
v_max_f32_dpp v8, v8, v8 quad_perm:[2,3,0,1] row_mask:0xf bank_mask:0xf
v_max_f32_dpp v8, v8, v8 row_half_mirror row_mask:0xf bank_mask:0xf
s_mov_b32 s82, 0x3fb8aa3b
v_sub_f32 v9, v6, v8
v_mul_f32 v9, s82, v9
v_exp_f32 v9, v9
v_mul_f32 v9, v9, v7
v_add_f32_dpp v9, v9, v9 quad_perm:[1,0,3,2] row_mask:0xf bank_mask:0xf
v_add_f32_dpp v9, v9, v9 quad_perm:[2,3,0,1] row_mask:0xf bank_mask:0xf
v_add_f32_dpp v9, v9, v9 row_half_mirror row_mask:0xf bank_mask:0xf''')
    a(f'''v_and_b32 v5, 15, v1
v_lshlrev_b32 v5, 3, v5
ds_read_b64 v[6:7], v5 offset:{L_MLW}
s_waitcnt lgkmcnt(0)''')
    ml_combine()
    a(f'''s_and_b32 s72, s2, 31
s_lshl_b32 s72, s72, 7
s_add_u32 s72, s72, {WS_ML}
s_lshr_b32 s73, s2, 5
s_lshl_b32 s73, s73, 4
s_add_u32 s73, s73, s72
v_and_b32 v5, 8, v1
s_mov_b64 exec, 0x101
buffer_store_dwordx2 v[8:9], v5, s[12:15], s73 offen sc1
s_mov_b64 exec, -1
v_and_b32 v4, 7, v1
v_lshl_add_u32 v4, v4, 4, v5''')
    poll([(6, 2, 4, 's72', 0)], 2)
    ml_combine()
    a(f'''v_rcp_f32 v9, v9
s_mov_b64 exec, 0x101
ds_write_b64 v5, v[8:9] offset:{L_GML}
s_mov_b64 exec, -1''')
    lds_inc(L_MLF, 0, 2)
    stamp(5)
    a.label('L_c_mid')
    a('''s_cmp_ge_u32 s2, 216
s_cbranch_scc1 L_t_none
s_cmp_ge_u32 s2, 144
s_cbranch_scc1 L_t_o''')
    a('s_cmp_eq_u32 s3, 0\ns_cbranch_scc1 L_f_arr')
    wait_arrival(0, 64, 2, 3)
    a.label('L_f_arr')
    srd(a, 28, PX, SZ['x'])
    XW = 3
    G0 = RAW
    a(f'''v_and_b32 v3, 31, v1
v_lshlrev_b32 v4, 4, v3
v_lshlrev_b32 v5, 3, v3
s_lshl_b32 s72, s3, 9
s_add_u32 s72, s72, {WS_MOD + 1152*4}
s_add_u32 s73, s72, 2304
s_add_u32 s74, s73, 2304
s_mov_b32 s75, {WS_MOD + 1152*4 + 2048}
v_lshrrev_b32 v6, 5, v1
v_mul_u32_u24 v6, 1152, v6
v_lshl_add_u32 v7, v3, 3, v6
v_lshl_add_u32 v6, v3, 2, v6
s_lshl_b32 s76, s3, 8
buffer_load_dwordx2 {vr(G0+18,2)}, v7, s[28:31], s76 offen
buffer_load_dword v{G0+20}, v6, s[28:31], 0 offen offset:1024''')
    poll([(G0, 4, 4, 's72', 0), (G0 + 4, 4, 4, 's73', 0), (G0 + 8, 4, 4, 's74', 0),
          (G0 + 12, 2, 5, 's75', 0), (G0 + 14, 2, 5, 's75', 2304)], 2)
    a('s_add_u32 s75, s75, 4608')
    poll([(G0 + 16, 2, 5, 's75', 0)], 2)
    a('v_lshrrev_b32 v2, 5, v1\nv_lshlrev_b32 v2, 4, v2\nv_sub_u32 v2, 16, v2')
    for i in range(18):
        a(f'v_lshlrev_b32 v{G0+i}, v2, v{G0+i}\nv_and_b32 v{G0+i}, 0xffff0000, v{G0+i}')
    cbs = [G0 + 8 + i for i in range(4)] + [G0 + 16, G0 + 17]
    for r in cbs: a(f'v_add_f32 v{r}, 1.0, v{r}')
    unpack(G0 + 18, G0 + 22); unpack(G0 + 19, G0 + 24); unpack(G0 + 20, G0 + 26)
    for i in range(4):
        a(f'v_cvt_pk_bf16_f32 v{PRM+2*i}, v{G0+22+i}, v{G0+i}')
        a(f'v_cvt_pk_bf16_f32 v{PRM+2*i+1}, v{G0+8+i}, v{G0+4+i}')
    for i in range(2):
        a(f'v_cvt_pk_bf16_f32 v{PRM2+2*i}, v{G0+26+i}, v{G0+12+i}')
        a(f'v_cvt_pk_bf16_f32 v{PRM2+2*i+1}, v{G0+16+i}, v{G0+14+i}')
    B1R, GBR, B2R = 162, 163, 164
    srd(a, 28, PB1, SZ['b1'])
    a(f'''v_lshrrev_b32 v2, 1, v1
v_lshlrev_b32 v2, 1, v2
s_lshl_b32 s72, s2, 6
buffer_load_ushort v{B1R}, v2, s[28:31], s72 offen''')
    srd(a, 24, PB2, SZ['b2'])
    a(f'''s_cmp_ge_u32 s2, 72
s_cselect_b32 s76, 1, 0
s_mul_i32 s72, s76, 72
s_sub_u32 s77, s2, s72
v_and_b32 v3, 7, v1
v_lshlrev_b32 v2, 1, v3
s_lshl_b32 s72, s77, 4
buffer_load_ushort v{B2R}, v2, s[24:27], s72 offen
v_lshlrev_b32 v4, 2, v3
s_lshl_b32 s72, s77, 5
s_add_u32 s72, s72, {WS_MOD + 2880*4}''')
    poll([(GBR, 1, 4, 's72', 0)], 2)
    a(f'''s_lshl_b32 s72, s76, 4
s_sub_u32 s72, 16, s72
v_lshlrev_b32 v{GBR}, s72, v{GBR}
v_and_b32 v{GBR}, 0xffff0000, v{GBR}
v_lshlrev_b32 v{B1R}, 16, v{B1R}
v_lshlrev_b32 v{B2R}, 16, v{B2R}''')
    lds_spin(L_CNTV, 8, 0, 2)
    srd(a, 20, PW1, SZ['w1']); srd(a, 24, PW2, SZ['w2'])
    a('s_mov_b32 s70, 9216\ns_mov_b32 s71, s2')
    narrow_loads(20, XW)
    a(f'''v_lshrrev_b32 v2, 4, v1
v_mul_u32_u24 v2, 1152, v2
v_and_b32 v3, 15, v1
v_lshl_add_u32 v2, v3, 4, v2
s_mul_i32 s72, s2, {32*1152}
s_lshl_b32 s73, s3, 8
s_add_u32 s73, s73, s72''')
    for jj in range(8):
        a(f'buffer_load_dwordx4 {vr(W2+4*jj,4)}, v2, s[24:27], s73 offen{NT}')
        if jj < 7: a('s_add_u32 s73, s73, 4608')
    a(f'''s_cmp_lg_u32 s3, 2
s_cbranch_scc1 L_f_nw2x
s_add_u32 s73, s72, 1024
s_mov_b32 exec_lo, 0x00ff00ff
s_mov_b32 exec_hi, 0x00ff00ff''')
    for jj in range(8):
        a(f'buffer_load_dwordx4 {vr(W2X+4*jj,4)}, v2, s[24:27], s73 offen{NT}')
        if jj < 7: a('s_add_u32 s73, s73, 4608')
    a('s_mov_b64 exec, -1')
    a.label('L_f_nw2x')
    def publish_op(lbl):
        a(f's_cmp_lg_u32 s3, 0\ns_cbranch_scc1 {lbl}')
        a(f'''v_lshlrev_b32 v2, 4, v1
s_and_b32 s72, s2, 31
s_lshl_b32 s72, s72, 3
s_lshr_b32 s73, s2, 5
s_add_u32 s72, s72, s73
s_lshl_b32 s72, s72, 10
s_add_u32 s72, s72, {WS_OP}''')
        lds_spin(L_CNTB, 8, 0, 3)
        T0 = TR2
        for w in range(4): a(f'ds_read_b128 {vr(TR2+4*w,4)}, v2 offset:{L_OPL+1024*w}')
        a('s_waitcnt lgkmcnt(0)')
        for r in range(4): a(f'v_add_f32 v{4+r}, v{TR2+r}, v{TR2+4+r}')
        for r in range(4): a(f'v_add_f32 v{8+r}, v{TR2+8+r}, v{TR2+12+r}')
        for w in range(4): a(f'ds_read_b128 {vr(TR2+4*w,4)}, v2 offset:{L_OPL+1024*(4+w)}')
        for r in range(4): a(f'v_add_f32 v{4+r}, v{4+r}, v{8+r}')
        a('s_waitcnt lgkmcnt(0)')
        for r in range(4): a(f'v_add_f32 v{8+r}, v{TR2+r}, v{TR2+4+r}')
        for r in range(4): a(f'v_add_f32 v{TR2+r}, v{TR2+8+r}, v{TR2+12+r}')
        for r in range(4): a(f'v_add_f32 v{8+r}, v{8+r}, v{TR2+r}')
        for r in range(4): a(f'v_add_f32 v{4+r}, v{4+r}, v{8+r}')
        a('buffer_store_dwordx4 v[4:7], v2, s[12:15], s72 offen sc1')
        stamp(6)
        a.label(lbl)
    publish_op('L_f_pub')
    a('s_waitcnt vmcnt(0)')
    transpose8(RAW, TR)
    a(f's_cmp_lg_u32 s3, {XW}\ns_cbranch_scc1 L_f_ntx')
    transpose4(RAW2, TR2)
    a.label('L_f_ntx')
    a(f'''v_lshrrev_b32 v2, 5, v1
v_mul_u32_u24 v2, 2304, v2
v_and_b32 v3, 31, v1
v_lshl_add_u32 v4, v3, 4, v2
v_lshl_add_u32 v5, v3, 3, v2
s_lshl_b32 s72, s3, 9
v_add_u32 v4, s72, v4
v_add_u32 v5, 2048, v5''')
    for r in range(8): a(f's_mov_b32 s{84+r if not cfg.stamps else 28+r}, {WS_X1P + 4608*r}')
    SO = (lambda r: f's{84+r}') if not cfg.stamps else (lambda r: f's{28+r}')
    a(f's_cmp_eq_u32 s3, {XW}\ns_cbranch_scc1 L_f_px')
    poll([(RAW + 4 * r, 4, 4, SO(r), 0) for r in range(8)], 2)
    a('s_branch L_f_pd')
    a.label('L_f_px')
    poll([(RAW + 4 * r, 4, 4, SO(r), 0) for r in range(8)] + [(RAW2 + 2 * r, 2, 5, SO(r), 0) for r in range(8)], 2)
    for st in (1, 2, 4):
        for r in range(0, 8, 2 * st):
            for i in range(2): a(f'v_add_f32 v{RAW2+2*r+i}, v{RAW2+2*r+i}, v{RAW2+2*(r+st)+i}')
    a.label('L_f_pd')
    for st in (1, 2, 4):
        for r in range(0, 8, 2 * st):
            for i in range(4): a(f'v_add_f32 v{RAW+4*r+i}, v{RAW+4*r+i}, v{RAW+4*(r+st)+i}')
    a(f'v_mov_b32 v{RAW+4}, v{RAW2}\nv_mov_b32 v{RAW+5}, v{RAW2+1}')
    X = [RAW + i for i in range(6)]
    P0 = [PRM + 2 * i for i in range(4)] + [PRM2, PRM2 + 2]
    P1 = [PRM + 2 * i + 1 for i in range(4)] + [PRM2 + 1, PRM2 + 3]
    Tm = [RAW + 8 + i for i in range(6)]
    rnd(X, 2)
    for i in range(6): a(f'v_and_b32 v{Tm[i]}, 0xffff0000, v{P0[i]}\nv_mul_f32 v{X[i]}, v{X[i]}, v{Tm[i]}')
    rnd(X, 2)
    for i in range(6): a(f'v_lshlrev_b32 v{Tm[i]}, 16, v{P0[i]}\nv_add_f32 v{X[i]}, v{X[i]}, v{Tm[i]}')
    rnd(X, 2)
    a(f'ds_write_b128 v4, {vr(RAW,4)} offset:{L_X1}')
    a(f'''v_readlane_b32 s72, v{RAW}, 0
v_readlane_b32 s73, v{RAW}, 32
v_mov_b32 v6, s72
v_mov_b32 v7, s73
s_mov_b32 s66, 0
s_mov_b32 s67, -1
v_cndmask_b32 v6, v6, v7, s[66:67]''')
    for i in range(6): a(f'v_sub_f32 v{Tm[i]}, v{X[i]}, v6')
    a(f'''v_add_f32 v7, v{Tm[0]}, v{Tm[1]}
v_mul_f32 v8, v{Tm[0]}, v{Tm[0]}
v_add_f32 v9, v{Tm[2]}, v{Tm[3]}
v_fmac_f32 v8, v{Tm[1]}, v{Tm[1]}
v_add_f32 v7, v7, v9
v_fmac_f32 v8, v{Tm[2]}, v{Tm[2]}
v_fmac_f32 v8, v{Tm[3]}, v{Tm[3]}
s_mov_b32 s82, 0x3c000000
s_cmp_lg_u32 s3, {XW}
s_cbranch_scc1 L_f_st
ds_write_b64 v5, {vr(RAW+4,2)} offset:{L_X1}
v_add_f32 v7, v7, v{Tm[4]}
v_fmac_f32 v8, v{Tm[4]}, v{Tm[4]}
v_add_f32 v7, v7, v{Tm[5]}
v_fmac_f32 v8, v{Tm[5]}, v{Tm[5]}
s_mov_b32 s82, 0x3baaaaab
L_f_st:''')
    half_reduce([7, 8], [9, 10])
    a(f'''v_mul_f32 v9, s82, v7
v_add_f32 v10, v6, v9
v_fma_f32 v11, -v9, v7, v8
v_lshrrev_b32 v2, 5, v1
v_lshlrev_b32 v2, 5, v2
s_lshl_b32 s72, s3, 3
v_add_u32 v3, s72, v2
s_mov_b32 exec_lo, 1
s_mov_b32 exec_hi, 1
ds_write_b64 v3, v[10:11] offset:{L_STAT}
s_mov_b64 exec, -1
s_waitcnt lgkmcnt(0)
s_barrier
ds_read_b128 v[4:7], v2 offset:{L_STAT}
ds_read_b128 v[8:11], v2 offset:{L_STAT+16}
s_waitcnt lgkmcnt(0)''')
    assert XW == 3
    a('''v_add_f32 v2, v4, v6
v_add_f32 v2, v2, v8
v_add_f32 v2, v2, v2
s_mov_b32 s82, 0x40400000
v_fmac_f32 v2, s82, v10
s_mov_b32 s82, 0x3de38e39
v_mul_f32 v2, s82, v2
v_sub_f32 v4, v4, v2
v_sub_f32 v6, v6, v2
v_sub_f32 v8, v8, v2
v_sub_f32 v10, v10, v2
v_mul_f32 v3, v4, v4
v_fmac_f32 v3, v6, v6
v_fmac_f32 v3, v8, v8
s_mov_b32 s82, 0x3fc00000
v_mul_f32 v10, v10, v10
v_fmac_f32 v3, s82, v10
v_add_f32 v5, v5, v7
v_add_f32 v9, v9, v11
v_add_f32 v5, v5, v9
s_mov_b32 s82, 0x43000000
v_fmac_f32 v5, s82, v3
s_mov_b32 s82, 0x3ae38e39
v_mul_f32 v3, s82, v5''')
    ln_finish(2, 3, 4)
    for i in range(6): a(f'v_sub_f32 v{X[i]}, v{X[i]}, v2')
    rnd(X, 4)
    for i in range(6): a(f'v_mul_f32 v{X[i]}, v{X[i]}, v3')
    rnd(X, 4)
    for i in range(6): a(f'v_lshlrev_b32 v{Tm[i]}, 16, v{P1[i]}\nv_mul_f32 v{X[i]}, v{X[i]}, v{Tm[i]}')
    rnd(X, 4)
    for i in range(6): a(f'v_and_b32 v{Tm[i]}, 0xffff0000, v{P1[i]}\nv_add_f32 v{X[i]}, v{X[i]}, v{Tm[i]}')
    for i in range(3): a(f'v_cvt_pk_bf16_f32 v{4+i}, v{X[2*i]}, v{X[2*i+1]}')
    a(f'''s_lshl_b32 s72, s3, 10
s_add_u32 s72, s72, {L_AV}
v_lshlrev_b32 v2, 3, v1
v_add_u32 v2, s72, v2
ds_write_b64 v2, v[4:5]
v_lshlrev_b32 v3, 2, v1
v_add_u32 v3, s72, v3
ds_write_b32 v3, v6 offset:512
v_lshrrev_b32 v7, 2, v1
v_and_b32 v8, 1, v1
v_lshlrev_b32 v9, 8, v8
v_lshl_add_u32 v9, v7, 4, v9
v_add_u32 v9, s72, v9
v_lshlrev_b32 v10, 7, v8
v_lshl_add_u32 v10, v7, 3, v10
v_add_u32 v10, s72, v10
s_waitcnt lgkmcnt(0)
ds_read_b128 {vr(A,4)}, v9
ds_read_b64 {vr(A2,2)}, v10 offset:512
s_waitcnt lgkmcnt(0)''')
    narrow_mfma(XW, do_transpose=False)
    a('s_waitcnt lgkmcnt(0)\ns_barrier')
    narrow_sum(3)
    rnd([3], 2)
    a(f'v_add_f32 v3, v3, v{B1R}')
    rnd([3], 2)
    a('v_max_f32 v3, 0, v3\nv_mul_f32 v3, v3, v3\nv_cvt_pk_bf16_f32 v3, v3, v3')
    MR2, AT2, TV, D2 = RAW, RAW + 4, RAW + 12, RAW + 20
    a(f'''s_lshl_b32 s72, s3, 8
s_add_u32 s72, s72, {L_TD}
v_and_b32 v4, 1, v1
v_lshlrev_b32 v4, 7, v4
v_bfe_u32 v5, v1, 1, 2
v_lshl_add_u32 v4, v5, 5, v4
v_lshrrev_b32 v5, 3, v1
v_lshl_add_u32 v4, v5, 2, v4
v_add_u32 v4, s72, v4
ds_write_b32 v4, v3
v_bfe_u32 v4, v1, 3, 1
v_lshlrev_b32 v4, 7, v4
v_lshrrev_b32 v5, 4, v1
v_lshl_add_u32 v4, v5, 5, v4
v_add_u32 v4, s72, v4
v_and_b32 v5, 1, v1
v_lshlrev_b32 v5, 4, v5
v_mov_b32 v6, 0xffff
v_lshlrev_b32 v5, v5, v6
v_bfe_u32 v6, v1, 1, 2
s_waitcnt lgkmcnt(0)
ds_read_b128 {vr(TV,4)}, v4
ds_read_b128 {vr(TV+4,4)}, v4 offset:16''')
    for r in range(4): a(f'v_cmp_eq_u32 vcc, {r}, v6\nv_cndmask_b32 v{MR2+r}, 0, v5, vcc')
    a(f'''v_lshrrev_b32 v7, 5, v1
v_mul_u32_u24 v7, 2304, v7
v_and_b32 v8, 15, v1
v_lshl_add_u32 v7, v8, 5, v7
v_bfe_u32 v8, v1, 4, 1
v_lshl_add_u32 v7, v8, 4, v7
s_mul_i32 s72, s2, 4608
s_add_u32 s72, s72, {WS_YP}
s_lshl_b32 s73, s3, 9
s_add_u32 s73, s73, s72
s_waitcnt lgkmcnt(0)
s_cmp_eq_u32 s3, 2
s_cbranch_scc1 L_f2_x''')
    def f2(extra):
        for jj in range(8):
            at = AT2 + 4 * (jj % 2)
            for r in range(4): a(f'v_and_b32 v{at+r}, v{TV+jj}, v{MR2+r}')
            a(f'v_mfma_f32_16x16x32_bf16 {vr(D2,4)}, {vr(at,4)}, {vr(W2+4*jj,4)}, ' + ('0' if jj == 0 else vr(D2, 4)))
            if extra: a(f'v_mfma_f32_16x16x32_bf16 {vr(D2+4,4)}, {vr(at,4)}, {vr(W2X+4*jj,4)}, ' + ('0' if jj == 0 else vr(D2 + 4, 4)))
        a(f'buffer_store_dwordx4 {vr(D2,4)}, v7, s[12:15], s73 offen sc1')
        if extra:
            a(f'''s_mov_b32 exec_lo, 0x00ff00ff
s_mov_b32 exec_hi, 0x00ff00ff
buffer_store_dwordx4 {vr(D2+4,4)}, v7, s[12:15], s72 offen offset:2048 sc1
s_mov_b64 exec, -1''')
    f2(False)
    a('s_branch L_f2_d')
    a.label('L_f2_x')
    f2(True)
    a.label('L_f2_d')
    a(f'''v_lshrrev_b32 v2, 1, v1
v_mul_u32_u24 v2, 4608, v2
v_and_b32 v3, 1, v1
v_lshl_add_u32 v2, v3, 4, v2
s_mul_i32 s72, s76, 2304
s_lshl_b32 s73, s77, 5
s_add_u32 s72, s72, s73
s_add_u32 s72, s72, {WS_YP}
s_mul_i32 s73, s3, {32*4608}
s_add_u32 s73, s73, s72
s_add_u32 s74, s72, {128*4608}
s_cmp_eq_u32 s3, 1
s_cbranch_scc1 L_fin_x''')
    poll([(4, 4, 2, 's73', 0)], 3)
    a('s_branch L_fin_d')
    a.label('L_fin_x')
    a(f'''v_mov_b32 v12, s74
v_mov_b32 v13, s73
s_mov_b32 s66, 0
s_mov_b32 s67, -1
v_cndmask_b32 v12, v12, v13, s[66:67]
v_add_u32 v12, v12, v2''')
    poll([(4, 4, 2, 's73', 0), (8, 4, 12, '0', 0)], 3)
    for r in range(4): a(f'v_cndmask_b32 v{8+r}, v{8+r}, 0, s[66:67]')
    for r in range(4): a(f'v_add_f32 v{4+r}, v{4+r}, v{8+r}')
    a.label('L_fin_d')
    for sh in (2, 4, 8):
        for r in range(4): a(f'v_add_f32_dpp v{4+r}, v{4+r}, v{4+r} row_ror:{sh} row_mask:0xf bank_mask:0xf')
    a(f'''v_lshrrev_b32 v2, 4, v1
v_lshlrev_b32 v2, 5, v2
v_and_b32 v3, 1, v1
v_lshl_add_u32 v2, v3, 4, v2
s_lshl_b32 s72, s3, 7
v_add_u32 v2, s72, v2
s_mov_b32 exec_lo, 0x00030003
s_mov_b32 exec_hi, 0x00030003
ds_write_b128 v2, v[4:7] offset:{L_FIN}
s_mov_b64 exec, -1''')
    lds_last(L_CNTF, 4, 0, 2, 'L_fin_end')
    a(f'''v_and_b32 v3, 7, v1
v_lshlrev_b32 v2, 2, v3''')
    for p in range(16): a(f'ds_read_b32 v{TR+p}, v2 offset:{L_FIN+32*p}')
    a(f'''s_mul_i32 s72, s76, 2304
s_lshl_b32 s73, s77, 5
s_add_u32 s72, s72, s73
v_add_u32 v4, s72, v2
ds_read_b32 v5, v4 offset:{L_X1}
s_waitcnt lgkmcnt(0)''')
    for st in (1, 2, 4, 8):
        for p in range(0, 16, 2 * st): a(f'v_add_f32 v{TR+p}, v{TR+p}, v{TR+p+st}')
    rnd([TR], 2)
    a(f'v_add_f32 v{TR}, v{TR}, v{B2R}')
    rnd([TR], 2)
    a(f'v_mul_f32 v{TR}, v{TR}, v{GBR}')
    rnd([TR], 2)
    a(f'v_add_f32 v{TR}, v{TR}, v5\nv_cvt_pk_bf16_f32 v6, v{TR}, v{TR}')
    srd(a, 28, POUT, SZ['out'])
    a(f'''v_lshlrev_b32 v3, 1, v3
s_lshr_b32 s72, s72, 1
s_mov_b64 exec, 0xff
buffer_store_short v6, v3, s[28:31], s72 offen
s_mov_b64 exec, -1''')
    a.label('L_fin_end')
    if cfg.stamps:
        a('s_cmp_lg_u32 s3, 0\ns_cbranch_scc1 L_end')
        stamp(7); store_stamps(0)
    a('s_endpgm')

    a.label('L_t_o')
    RA, RB, TA, TB = 16, 80, 48, 112
    srd(a, 20, PWO, SZ['wo'])
    a(f'''s_sub_u32 s71, s2, 144
s_mul_i32 s76, s71, 57
s_lshr_b32 s76, s76, 9
s_mul_i32 s73, s76, 9
s_sub_u32 s77, s71, s73
v_lshrrev_b32 v2, 3, v1
v_mul_u32_u24 v2, {8*1152}, v2
v_and_b32 v3, 7, v1
v_lshl_add_u32 v2, v3, 4, v2
s_lshl_b32 s72, s76, 9
s_lshl_b32 s73, s3, 7
s_add_u32 s72, s72, s73
s_mul_i32 s72, s72, 1152
s_lshl_b32 s73, s77, 7
s_add_u32 s72, s72, s73''')
    a('s_cmp_eq_u32 s3, 0\ns_cbranch_scc1 L_o_arr')
    wait_arrival(0, 64, 4, 5)
    a.label('L_o_arr')
    lds_spin(L_CNTV, 8, 0, 3)
    for blk, R in ((0, RA), (1, RB)):
        for j in range(8):
            row = 64 * blk + j
            o = row * 1152
            a(f's_add_u32 s73, s72, {o & ~0xfff}')
            a(f'buffer_load_dwordx4 {vr(R+4*j,4)}, v2, s[20:23], s73 offen offset:{o & 0xfff}{NT}')
    a(f's_cmp_lg_u32 s3, 0\ns_cbranch_scc1 L_o_pub')
    a(f'''v_lshlrev_b32 v2, 4, v1
s_and_b32 s72, s2, 31
s_lshl_b32 s72, s72, 3
s_lshr_b32 s73, s2, 5
s_add_u32 s72, s72, s73
s_lshl_b32 s72, s72, 10
s_add_u32 s72, s72, {WS_OP}''')
    lds_spin(L_CNTB, 8, 0, 3)
    for w in range(8): a(f'ds_read_b128 {vr(TA+4*w,4)}, v2 offset:{L_OPL+1024*w}')
    a('s_waitcnt lgkmcnt(0)')
    for st in (1, 2, 4):
        for w in range(0, 8, 2 * st):
            for r in range(4): a(f'v_add_f32 v{TA+4*w+r}, v{TA+4*w+r}, v{TA+4*(w+st)+r}')
    a(f'buffer_store_dwordx4 {vr(TA,4)}, v2, s[12:15], s72 offen sc1')
    stamp(6)
    a.label('L_o_pub')
    a('s_waitcnt vmcnt(0)')
    transpose8(RA, TA); transpose8(RB, TB)
    a(f'''v_lshrrev_b32 v2, 5, v1
v_lshlrev_b32 v2, 17, v2
v_and_b32 v3, 31, v1
v_lshl_add_u32 v2, v3, 4, v2
s_lshl_b32 s72, s76, 1
s_lshr_b32 s73, s3, 1
s_add_u32 s72, s72, s73
s_lshl_b32 s72, s72, 13
s_and_b32 s73, s3, 1
s_lshl_b32 s73, s73, 9
s_add_u32 s72, s72, s73
s_add_u32 s72, s72, {WS_OP}
s_add_u32 s73, s72, 4096''')
    poll([(RA + 4 * s, 4, 2, 's72' if s < 4 else 's73', (s % 4) * 1024) for s in range(8)], 3)
    for st in (1, 2, 4):
        for w in range(0, 8, 2 * st):
            for r in range(4): a(f'v_add_f32 v{RA+4*w+r}, v{RA+4*w+r}, v{RA+4*(w+st)+r}')
    a(f'''v_cvt_pk_bf16_f32 v4, v{RA}, v{RA+1}
v_cvt_pk_bf16_f32 v5, v{RA+2}, v{RA+3}
s_lshl_b32 s72, s3, 10
s_add_u32 s72, s72, {L_AV}
v_lshlrev_b32 v2, 3, v1
v_add_u32 v2, s72, v2
ds_write_b64 v2, v[4:5]
v_lshrrev_b32 v7, 4, v1
v_bfe_u32 v8, v1, 2, 1
v_lshl_add_u32 v7, v7, 1, v8
v_and_b32 v8, 1, v1
v_lshlrev_b32 v9, 8, v8
v_lshl_add_u32 v9, v7, 4, v9
v_add_u32 v9, s72, v9
s_waitcnt lgkmcnt(0)
ds_read_b128 {vr(A,4)}, v9
ds_read_b128 {vr(A+4,4)}, v9 offset:128
s_waitcnt lgkmcnt(0)''')
    for e in range(8): a(f'v_mfma_f32_16x16x32_bf16 {vr(RB+4*e,4)}, {vr(A,4)}, {vr(TA+4*e,4)}, 0')
    for e in range(8): a(f'v_mfma_f32_16x16x32_bf16 {vr(RB+4*e,4)}, {vr(A+4,4)}, {vr(TB+4*e,4)}, {vr(RB+4*e,4)}')
    a(f'''v_and_b32 v2, 7, v1
v_lshlrev_b32 v2, 6, v2
v_lshrrev_b32 v3, 4, v1
v_lshl_add_u32 v2, v3, 9, v2
s_lshl_b32 s72, s3, 10
v_add_u32 v2, s72, v2
s_mov_b32 exec_lo, 0xff0000ff
s_mov_b32 exec_hi, 0''')
    for e in range(8): a(f'ds_write_b64 v2, {vr(RB+4*e,2)} offset:{L_RED+8*e}')
    a('s_mov_b64 exec, -1')
    lds_last(L_CNTO, 4, 0, 2, 'L_o_end')
    a('v_lshlrev_b32 v2, 3, v1')
    for p in range(8): a(f'ds_read_b64 {vr(TA+2*p,2)}, v2 offset:{L_RED+512*p}')
    a(f'''v_lshlrev_b32 v3, 2, v1
s_mul_i32 s72, s76, 4608
s_lshl_b32 s73, s77, 8
s_add_u32 s72, s72, s73
s_add_u32 s72, s72, {WS_X1P}
s_waitcnt lgkmcnt(0)''')
    for st in (1, 2, 4):
        for p in range(0, 8, 2 * st):
            for r in range(2): a(f'v_add_f32 v{TA+2*p+r}, v{TA+2*p+r}, v{TA+2*(p+st)+r}')
    a(f'''buffer_store_dword v{TA}, v3, s[12:15], s72 offen sc1
buffer_store_dword v{TA+1}, v3, s[12:15], s72 offen offset:2304 sc1''')
    a.label('L_o_end')
    if cfg.stamps:
        a('s_cmp_lg_u32 s3, 0\ns_cbranch_scc1 L_end')
        stamp(7); store_stamps(0)
    a('s_endpgm')

    a.label('L_t_none')
    publish_op('L_n_pub')
    if cfg.stamps:
        a('s_cmp_lg_u32 s3, 0\ns_cbranch_scc1 L_end')
        stamp(7); store_stamps(0)
    a.label('L_end')
    a('s_endpgm')
    open(fname, 'w').write(build_file([(kn, a, 168, 102, None)], [(None, 256, 768, LDS_BYTES)]))

if __name__ == '__main__':
    c = Cfg()
    gen(c, 'fused.s')
    c.stamps = True
    gen(c, 'fused_st.s')
    c = Cfg(); c.nt = False
    gen(c, 'fused_nont.s')
```

```python
import sys
from asmlib import *

WS_MOD = 0x00000
WS_MOD2 = 0x04000
WS_Q   = 0x08000
WS_OP  = 0x10000
WS_X1P = 0x50000
WS_ML  = 0x5A000
WS_ARR = 0x5C000
WS_EP  = 0x5F000
WS_YP  = 0x60000
WS_ST  = 0x200000
L_CNTA, L_CNTB, L_QF, L_MLF, L_CNTH, L_CNTO, L_CNTF, L_CNTV, L_GO, L_ARR, L_PUB, L_CNTK = 0, 4, 8, 12, 16, 20, 24, 28, 32, 36, 40, 44
L_GML = 0x40
L_MLW = 0x80
L_Q   = 0x200
L_OPL = 0x400
L_RED = 0x2400
L_AV  = 0x3400
L_STAT = 0x4400
L_FIN = 0x4480
L_X1  = 0x4800
L_TD  = 0x5A00
L_V = 0x6000
LDS_BYTES = 0x26000
SPIN_LIMIT = 100000

class Cfg:
    nt = True
    stamps = None
    stwave = 0
    ctwave = 0
    pause = 99
    pause_wgs = 164
    vsched = (1, 2, 3, 4)
    codepf = 0
    touch = True
    thr_n = 0
    thr_d = 2
    modsleep = 2
    modgap = 16
    fw_after = True
    allw = None
    kgate = True
    noround = False
    pre = 4
    earlybar = True
    w1_from = 78
    wo_at = 'A'
    qprio = None
    qsets = 3
    qsleep = 2
    cprio = 3

def gen(cfg, fname):
    a = Asm()
    kn = NAME + '_kernel'
    NT = ' nt' if cfg.nt else ''
    PX, PK, PV, PWQ, PWO, PW1, PB1, PW2, PB2, PC, PWM, POUT, PDBG, PWS = 36, 38, 40, 42, 44, 48, 50, 52, 54, 56, 58, 60, 62, 64
    DPP = 'row_mask:0xf bank_mask:0xf'
    def stamp(name):
        if cfg.stamps and name in cfg.stamps:
            i = cfg.stamps[name]; a(f's_memrealtime s[{84+2*i}:{85+2*i}]')
    def store_stamps(slot):
        a('s_waitcnt lgkmcnt(0)')
        for i in range(8): a(f'v_mov_b32 v{2+i}, s{84+2*i}')
        a(f'''s_lshl_b32 s78, s2, 6
s_add_u32 s78, s78, {WS_ST + 32*slot}
v_mov_b32 v10, s78
s_mov_b64 exec, 1
buffer_store_dwordx4 v[2:5], v10, s[12:15], 0 offen
buffer_store_dwordx4 v[6:9], v10, s[12:15], 0 offen offset:16
s_mov_b64 exec, -1''')
    def chain_end():
        if cfg.stamps and not cfg.allw:
            a(f's_cmp_lg_u32 s3, {cfg.ctwave}\ns_cbranch_scc1 L_end')
            stamp('c_end'); store_stamps(0)
        a('s_endpgm')

    def lds_spin(off, target, vz, vt, sleep=1):
        L = a.newlabel('SP'); D = a.newlabel('SPD')
        a(f's_mov_b32 s80, 0')
        a.label(L)
        a(f'''ds_read_b32 v{vt}, v{vz} offset:{off}
s_waitcnt lgkmcnt(0)
v_readfirstlane_b32 s81, v{vt}
s_cmp_ge_u32 s81, {target}
s_cbranch_scc1 {D}
s_add_u32 s80, s80, 1
s_cmp_gt_u32 s80, {SPIN_LIMIT}
s_cbranch_scc1 {D}
s_sleep {sleep}
s_branch {L}''')
        a.label(D)
    def lds_inc(off, vz, vt):
        a(f'''s_waitcnt lgkmcnt(0)
v_mov_b32 v{vt}, 1
s_mov_b64 exec, 1
ds_add_u32 v{vz}, v{vt} offset:{off}
s_mov_b64 exec, -1''')
    def lds_last(off, n, vz, vt, skip_label):
        a(f'''v_mov_b32 v{vt}, 1
s_mov_b64 exec, 1
s_waitcnt lgkmcnt(0)
ds_add_rtn_u32 v{vt}, v{vz}, v{vt} offset:{off}
s_mov_b64 exec, -1
s_waitcnt lgkmcnt(0)
v_readfirstlane_b32 s81, v{vt}
s_cmp_lg_u32 s81, {n-1}
s_cbranch_scc1 {skip_label}''')

    def sum_poll(groups, vt):
        L = a.newlabel('PL'); D = a.newlabel('PLD')
        a('s_mov_b32 s80, 0')
        a.label(L)
        for g in groups:
            for (dst, n, va, so, imm) in g:
                op = {1: 'dword', 2: 'dwordx2', 4: 'dwordx4'}[n]
                a(f'buffer_load_{op} {vr(dst, n)}, v{va}, s[12:15], {so} offen offset:{imm} sc1')
        tot = sum(len(g) for g in groups)
        issued = 0
        res = []
        for g in groups:
            k = len(g); n = g[0][1]
            st = 1
            while st < k:
                for i in range(0, k, 2 * st):
                    if i + st < k:
                        if st == 1: a(f's_waitcnt vmcnt({tot - (issued + i + 2)})')
                        for h in range(0, n, 2):
                            a(f'v_pk_add_f32 {vr(g[i][0]+h,2)}, {vr(g[i][0]+h,2)}, {vr(g[i+st][0]+h,2)}')
                st *= 2
            issued += k
            res += [g[0][0] + h for h in range(n)]
        a('s_waitcnt vmcnt(0)')
        first = True
        for i in range(0, len(res), 2):
            if first: a(f'v_cmp_u_f32 s[66:67], v{res[i]}, v{res[i+1]}'); first = False
            else: a(f'v_cmp_u_f32 vcc, v{res[i]}, v{res[i+1]}\ns_or_b64 s[66:67], s[66:67], vcc')
        a(f'''s_cmp_eq_u64 s[66:67], 0
s_cbranch_scc1 {D}
s_add_u32 s80, s80, 1
s_cmp_gt_u32 s80, {SPIN_LIMIT}
s_cbranch_scc0 {L}''')
        a.label(D)

    def tpoll(loads, sleep=2, extra=None):
        L = a.newlabel('TP'); D = a.newlabel('TPD')
        a('s_mov_b32 s80, 0')
        a.label(L)
        for (dst, va, so, imm) in loads:
            a(f'buffer_load_dwordx4 {vr(dst,4)}, v{va}, s[12:15], {so} offen offset:{imm} sc1')
        a('s_waitcnt vmcnt(0)')
        for i, (dst, va, so, imm) in enumerate(loads):
            if i == 0: a(f'v_cmp_ne_u64 s[66:67], s[32:33], {vr(dst+2,2)}')
            else: a(f'v_cmp_ne_u64 vcc, s[32:33], {vr(dst+2,2)}\ns_or_b64 s[66:67], s[66:67], vcc')
        a(f'''s_cmp_eq_u64 s[66:67], 0
s_cbranch_scc1 {D}
s_add_u32 s80, s80, 1
s_cmp_gt_u32 s80, {SPIN_LIMIT}
s_cbranch_scc1 {D}
s_sleep {sleep}
s_branch {L}''')
        a.label(D)

    def poll_pipe(dst, loads, sets, gap=16, sleep=2):
        L = a.newlabel('PP'); n = len(sets); m = len(loads)
        Ds = [a.newlabel('PPD') for _ in sets]; E = a.newlabel('PPE')
        def ld(r):
            for k, (va, so) in enumerate(loads): a(f'buffer_load_dwordx4 {vr(r+4*k,4)}, v{va}, s[12:15], {so} offen sc1')
        a('s_mov_b32 s80, 0')
        for i, r in enumerate(sets):
            ld(r)
            if i + 1 < n: a(f's_sleep {gap}')
        a.label(L)
        for i, r in enumerate(sets):
            a(f's_waitcnt vmcnt({(n-1)*m})')
            if m == 1: a(f'v_cmp_ne_u64 vcc, s[32:33], {vr(r+2,2)}\ns_cbranch_vccz {Ds[i]}')
            else:
                a(f'v_cmp_ne_u64 s[66:67], s[32:33], {vr(r+2,2)}')
                for k in range(1, m): a(f'v_cmp_ne_u64 vcc, s[32:33], {vr(r+4*k+2,2)}\ns_or_b64 s[66:67], s[66:67], vcc')
                a(f's_cbranch_scc0 {Ds[i]}')
            a(f's_sleep {sleep}')
            ld(r)
        a(f'''s_add_u32 s80, s80, 1
s_cmp_gt_u32 s80, {SPIN_LIMIT}
s_cbranch_scc0 {L}''')
        for i, r in enumerate(sets):
            a.label(Ds[i])
            for k in range(m): a(f'v_mov_b32 v{dst+2*k}, v{r+4*k}\nv_mov_b32 v{dst+2*k+1}, v{r+4*k+1}')
            if i + 1 < n: a(f's_branch {E}')
        a.label(E)

    def wait_arrival(R):
        L = a.newlabel('AR'); D = a.newlabel('ARD')
        a(f'''s_mov_b32 s80, 0
v_lshlrev_b32 v2, 4, v1
s_mov_b32 s72, {WS_ARR}''')
        a.label(L)
        for i in range(4): a(f'buffer_load_dwordx2 {vr(R+2*i,2)}, v2, s[12:15], s72 offen offset:{1024*i} sc1')
        a('s_waitcnt vmcnt(0)')
        for i in range(4):
            if i == 0: a(f'v_cmp_ne_u64 s[66:67], s[32:33], {vr(R,2)}')
            else: a(f'v_cmp_ne_u64 vcc, s[32:33], {vr(R+2*i,2)}\ns_or_b64 s[66:67], s[66:67], vcc')
        a(f'''s_cbranch_scc0 {D}
s_add_u32 s80, s80, 1
s_cmp_gt_u32 s80, {SPIN_LIMIT}
s_cbranch_scc1 {D}
s_sleep 32
s_branch {L}''')
        a.label(D)

    def transpose8(R, T):
        for d in range(4):
            for dd in range(4):
                a(f'v_perm_b32 v{T+4*(2*d)+dd}, v{R+4*(2*dd+1)+d}, v{R+4*(2*dd)+d}, s78')
                a(f'v_perm_b32 v{T+4*(2*d+1)+dd}, v{R+4*(2*dd+1)+d}, v{R+4*(2*dd)+d}, s79')
    def transpose4(R, T):
        for d in range(4):
            for dd in range(2):
                a(f'v_perm_b32 v{T+2*(2*d)+dd}, v{R+4*(2*dd+1)+d}, v{R+4*(2*dd)+d}, s78')
                a(f'v_perm_b32 v{T+2*(2*d+1)+dd}, v{R+4*(2*dd+1)+d}, v{R+4*(2*dd)+d}, s79')
    def tr8(R, t0, t1):
        P = lambda dd, d: (R + 4 * (2 * dd) + d, R + 4 * (2 * dd + 1) + d)
        for d in range(4):
            x, y = P(d, d)
            a(f'v_perm_b32 v{t0}, v{y}, v{x}, s78\nv_perm_b32 v{y}, v{y}, v{x}, s79\nv_mov_b32 v{x}, v{t0}')
            for dd in range(d + 1, 4):
                x, y = P(dd, d); u, w = P(d, dd)
                a(f'''v_perm_b32 v{t0}, v{y}, v{x}, s78
v_perm_b32 v{t1}, v{y}, v{x}, s79
v_perm_b32 v{x}, v{w}, v{u}, s78
v_perm_b32 v{y}, v{w}, v{u}, s79
v_mov_b32 v{u}, v{t0}
v_mov_b32 v{w}, v{t1}''')
    def rnd(regs, tmps):
        prs = [(regs[i], regs[i + 1] if i + 1 < len(regs) else None) for i in range(0, len(regs), 2)]
        if isinstance(tmps, int): tmps = [tmps]
        for k in range(0, len(prs), len(tmps)):
            grp = prs[k:k + len(tmps)]
            for (x, y), t in zip(grp, tmps): a(f'v_cvt_pk_bf16_f32 v{t}, v{x}, v{y if y is not None else x}')
            for (x, y), t in zip(grp, tmps):
                a(f'v_lshlrev_b32 v{x}, 16, v{t}')
                if y is not None: a(f'v_and_b32 v{y}, 0xffff0000, v{t}')
    def unpack(src, dst):
        a(f'v_and_b32 v{dst+1}, 0xffff0000, v{src}')
        a(f'v_lshlrev_b32 v{dst}, 16, v{src}')
    def half_reduce(regs, tmps, op='v_add_f32'):
        for sh in (8, 4, 2, 1):
            for r in regs: a(f'{op}_dpp v{r}, v{r}, v{r} row_ror:{sh} {DPP}')
        for r, t in zip(regs, tmps): a(f'v_mov_b32 v{t}, v{r}')
        for r, t in zip(regs, tmps): a(f'v_permlane16_swap_b32 v{r}, v{t}')
        for r, t in zip(regs, tmps): a(f'{op} v{r}, v{r}, v{t}')
    def ln_finish(mean, var, t):
        rnd([mean, var], t)
        a(f'v_add_f32 v{var}, 0x3727c5ac, v{var}')
        rnd([var], t)
        a(f'v_sqrt_f32 v{var}, v{var}')
        rnd([var], t)
        a(f'v_rcp_f32 v{var}, v{var}')

    a(f'''s_cmp_ge_u32 s2, 256
s_cbranch_scc1 L_end
s_load_dwordx16 s[36:51], s[0:1], 0
s_load_dwordx8 s[52:59], s[0:1], 64
s_load_dwordx4 s[60:63], s[0:1], 96
s_load_dwordx2 s[64:65], s[0:1], 112
v_lshrrev_b32 v2, 6, v0
v_and_b32 v1, 63, v0
v_readfirstlane_b32 s3, v2
v_mov_b32 v0, 0''')
    stamp('start')
    if cfg.earlybar:
        a('''s_cmp_lg_u32 s3, 0
s_cbranch_scc1 L_noinit0
v_lshlrev_b32 v2, 2, v1
ds_write_b32 v2, v0
s_waitcnt lgkmcnt(0)
L_noinit0:
s_barrier''')
    a('''s_cmp_ge_u32 s3, 4
s_cbranch_scc1 L_stream''')
    RAW, TR, RAW2, TR2, W2, W2X = 16, 48, 80, 96, 112, 80
    A, A2 = 144, 148
    RA, RB, RC, ACC, AA = 16, 48, 80, 112, 144
    XS = 156
    a(f"""s_setprio {cfg.cprio}
s_mov_b32 s78, 0x05040100
s_mov_b32 s79, 0x07060302
s_mov_b32 s83, 1
s_sub_u32 s71, s2, 216
s_cmp_ge_u32 s2, 216
s_cbranch_scc1 L_role
s_add_u32 s71, s2, 40
s_cmp_lt_u32 s2, 24
s_cbranch_scc1 L_role
s_mov_b32 s83, 2
s_sub_u32 s71, s2, 24
s_cmp_lt_u32 s2, 78
s_cbranch_scc1 L_role
s_mov_b32 s83, 0
L_role:
s_lshl_b32 s74, s3, 1
s_min_u32 s75, s3, 1
s_add_u32 s74, s74, s75
s_mov_b32 s70, 8192
s_cmp_eq_u32 s83, 2
s_cselect_b32 s70, 6912, s70
v_lshrrev_b32 v14, 4, v1
v_bfe_u32 v2, v1, 2, 1
v_lshl_add_u32 v14, v14, 1, v2
v_and_b32 v2, 1, v1
v_mul_u32_u24 v2, 1152, v2
v_lshl_add_u32 v6, v14, 4, v2
v_lshrrev_b32 v3, 3, v1
v_mul_lo_u32 v3, v3, s70
v_and_b32 v8, 7, v1
v_lshlrev_b32 v8, 4, v8
v_lshl_add_u32 v4, v3, 3, v8
s_lshl_b32 s72, s71, 7
s_lshl_b32 s73, s74, 6
s_mul_i32 s73, s73, s70
s_add_u32 s73, s73, s72
s_mul_i32 s75, s70, 56
s_lshl_b32 s74, s74, 7
s_waitcnt lgkmcnt(0)""")
    stamp('c_karg')
    srd(a, 12, PWS, SZ['ws'])
    a(f"""s_mov_b32 s76, {WS_EP}
s_cmp_eq_u32 s83, 0
s_cbranch_scc1 L_nohead0
s_cmp_eq_u32 s83, 2
s_cselect_b32 s20, s{PWM}, s{PWQ}
s_cselect_b32 s21, s{PWM+1}, s{PWQ+1}
s_mov_b32 s22, {SZ['wq']}
s_cselect_b32 s22, {SZ['wmod']}, s22
s_mov_b32 s23, 0x00020000
s_cselect_b32 s28, s{PC}, s{PX}
s_cselect_b32 s29, s{PC+1}, s{PX+1}
s_mov_b32 s30, 2304
s_mov_b32 s31, 0x00020000
buffer_load_dwordx4 {vr(AA,4)}, v6, s[28:31], s74 offen
buffer_load_dwordx4 {vr(AA+4,4)}, v6, s[28:31], s74 offen offset:128
buffer_load_dwordx4 {vr(AA+8,4)}, v6, s[28:31], s74 offen offset:256
buffer_load_dwordx2 v[12:13], v0, s[12:15], s76 offen sc1
s_cbranch_scc1 L_h_w
v_lshrrev_b32 v2, 5, v1
v_mul_u32_u24 v2, 1152, v2
v_and_b32 v3, 31, v1
v_lshl_add_u32 v2, v3, 4, v2
buffer_load_dwordx4 {vr(XS,4)}, v2, s[28:31], 0 offen
buffer_load_dwordx4 {vr(XS+4,4)}, v2, s[28:31], 0 offen offset:512
v_mov_b32 v{XS+8}, 0
v_mov_b32 v{XS+9}, 0
v_mov_b32 v{XS+10}, 0
v_mov_b32 v{XS+11}, 0
s_mov_b32 exec_lo, 0xff
s_mov_b32 exec_hi, 0xff
buffer_load_dwordx4 {vr(XS+8,4)}, v2, s[28:31], 0 offen offset:1024
s_mov_b64 exec, -1
L_h_w:""")
    def blk_loads(R, last):
        for j in range(8):
            a(f'buffer_load_dwordx4 {vr(R+4*j,4)}, v4, s[20:23], s73 offen{NT}')
            a('s_add_u32 s73, s73, s70')
        if not last: a('s_add_u32 s73, s73, s75')
    blk_loads(RA, False); blk_loads(RB, False)
    a('s_cmp_lg_u32 s3, 0\ns_cbranch_scc1 L_h_w2')
    blk_loads(RC, True)
    a.label('L_h_w2')
    stamp('c_bar')
    def get_tag():
        a("""v_readfirstlane_b32 s32, v12
v_readfirstlane_b32 s33, v13
s_add_u32 s32, s32, 1
s_addc_u32 s33, s33, 0""")
    a('s_waitcnt vmcnt(16)')
    get_tag()
    a('s_cmp_eq_u32 s83, 1\ns_cbranch_scc1 L_hq')
    a('s_mov_b32 s82, 0xbfb8aa3b')
    for r in range(AA, AA + 12, 2):
        unpack(r, 2); unpack(r + 1, 4)
        for i in range(4): a(f'v_mul_f32 v{6+i}, s82, v{2+i}')
        for i in range(4): a(f'v_exp_f32 v{6+i}, v{6+i}')
        for i in range(4): a(f'v_add_f32 v{6+i}, 1.0, v{6+i}')
        for i in range(4): a(f'v_rcp_f32 v{6+i}, v{6+i}')
        for i in range(4): a(f'v_mul_f32 v{2+i}, v{2+i}, v{6+i}')
        a(f'v_cvt_pk_bf16_f32 v{r}, v2, v3\nv_cvt_pk_bf16_f32 v{r+1}, v4, v5')
    def head_tr():
        a('s_waitcnt vmcnt(8)')
        tr8(RA, 2, 3)
        a('s_waitcnt vmcnt(0)')
        stamp('c_w')
        tr8(RB, 2, 3)
        X = a.newlabel('HT')
        a(f's_cmp_lg_u32 s3, 0\ns_cbranch_scc1 {X}')
        tr8(RC, 2, 3)
        a.label(X)
    head_tr()
    a.label('L_hgemv')
    def g8_addr(v, t):
        a(f"""v_and_b32 v{v}, 7, v1
v_lshlrev_b32 v{v}, 6, v{v}
v_lshrrev_b32 v{t}, 4, v1
v_lshl_add_u32 v{v}, v{t}, 9, v{v}
s_lshl_b32 s72, s3, 10
v_add_u32 v{v}, s72, v{v}""")
    def g8_write(v, D):
        a('s_mov_b32 exec_lo, 0xff0000ff\ns_mov_b32 exec_hi, 0')
        for e in range(8): a(f'ds_write_b64 v{v}, {vr(D+4*e,2)} offset:{L_RED+8*e}')
        a('s_mov_b64 exec, -1')
    def g8_sum(T, va):
        for p in range(8): a(f'ds_read_b64 {vr(T+2*p,2)}, v{va} offset:{L_RED+512*p}')
        for p in range(0, 8, 2):
            a(f's_waitcnt lgkmcnt({6-p})')
            a(f'v_pk_add_f32 {vr(T+2*p,2)}, {vr(T+2*p,2)}, {vr(T+2*p+2,2)}')
        a(f"""v_pk_add_f32 {vr(T,2)}, {vr(T,2)}, {vr(T+4,2)}
v_pk_add_f32 {vr(T+8,2)}, {vr(T+8,2)}, {vr(T+12,2)}
v_pk_add_f32 {vr(T,2)}, {vr(T,2)}, {vr(T+8,2)}""")
    for e in range(8): a(f'v_mfma_f32_16x16x32_bf16 {vr(ACC+4*e,4)}, {vr(AA,4)}, {vr(RA+4*e,4)}, 0')
    for e in range(8): a(f'v_mfma_f32_16x16x32_bf16 {vr(ACC+4*e,4)}, {vr(AA+4,4)}, {vr(RB+4*e,4)}, {vr(ACC+4*e,4)}')
    a('s_cmp_lg_u32 s3, 0\ns_cbranch_scc1 L_hg2')
    for e in range(8): a(f'v_mfma_f32_16x16x32_bf16 {vr(ACC+4*e,4)}, {vr(AA+8,4)}, {vr(RC+4*e,4)}, {vr(ACC+4*e,4)}')
    a.label('L_hg2')
    g8_addr(2, 3)
    a('v_lshlrev_b32 v9, 3, v1')
    g8_write(2, ACC)
    lds_last(L_CNTH, 4, 0, 2, 'L_head_done')
    g8_sum(RA, 9)
    a(f"""v_mov_b32 v6, s32
v_mov_b32 v7, s33
s_cmp_eq_u32 s83, 2
s_cbranch_scc1 L_hs_m
v_mov_b32 v10, s32
v_mov_b32 v11, s33
v_mov_b32_dpp v2, v{RA} quad_perm:[1,0,3,2] {DPP}
v_mov_b32_dpp v3, v{RA+1} quad_perm:[1,0,3,2] {DPP}
v_cvt_pk_bf16_f32 v4, v{RA}, v2
v_cvt_pk_bf16_f32 v8, v{RA+1}, v3
v_mov_b32_dpp v5, v4 quad_perm:[2,3,0,1] {DPP}
v_mov_b32_dpp v9, v8 quad_perm:[2,3,0,1] {DPP}
v_lshlrev_b32 v2, 2, v1
s_lshl_b32 s72, s71, 8
s_add_u32 s72, s72, {WS_Q}
s_add_u32 s73, s72, 16384
s_mov_b32 exec_lo, 0x11111111
s_mov_b32 exec_hi, 0x11111111
buffer_store_dwordx4 v[4:7], v2, s[12:15], s72 offen sc1
buffer_store_dwordx4 v[8:11], v2, s[12:15], s73 offen sc1
s_mov_b64 exec, -1
s_branch L_head_done
L_hs_m:
v_cvt_pk_bf16_f32 v4, v{RA}, v{RA+1}
s_cmp_ge_u32 s71, 18
s_cbranch_scc1 L_hs_m2
v_mov_b32_dpp v5, v4 quad_perm:[1,0,3,2] {DPP}
s_lshl_b32 s72, s71, 9
s_add_u32 s72, s72, {WS_MOD}
s_mov_b32 exec_lo, 0x55555555
s_mov_b32 exec_hi, 0x55555555
buffer_store_dwordx4 v[4:7], v9, s[12:15], s72 offen sc1
s_mov_b64 exec, -1
s_branch L_head_done
L_hs_m2:
v_lshlrev_b32 v2, 2, v1
s_lshl_b32 s72, s71, 8
s_add_u32 s72, s72, {WS_MOD2 - 18*256}
buffer_store_dword v4, v2, s[12:15], s72 offen sc1
s_waitcnt vmcnt(0)""")
    lds_inc(L_GO, 0, 2)
    a('s_branch L_head_done')
    a.label('L_hq')
    N0 = ACC
    for i in range(12): unpack(XS + i, N0 + 2 * i)
    a(f'v_pk_add_f32 v[2:3], {vr(N0,2)}, {vr(N0+2,2)}')
    for i in range(4, 24, 2): a(f'v_pk_add_f32 v[2:3], v[2:3], {vr(N0+i,2)}')
    a('v_add_f32 v2, v2, v3')
    half_reduce([2], [3])
    a('s_mov_b32 s82, 0x3ae38e39\nv_mul_f32 v2, s82, v2')
    a('v_and_b32 v4, 31, v1\nv_cmp_gt_u32 vcc, 8, v4')
    for i in range(24): a(f'v_sub_f32 v{N0+i}, v{N0+i}, v2')
    for i in range(16, 24): a(f'v_cndmask_b32 v{N0+i}, 0, v{N0+i}, vcc')
    a(f'v_mul_f32 v3, v{N0}, v{N0}')
    for i in range(1, 24): a(f'v_fmac_f32 v3, v{N0+i}, v{N0+i}')
    half_reduce([3], [4])
    a('v_mul_f32 v3, s82, v3')
    ln_finish(2, 3, 4)
    a("""v_readlane_b32 s72, v2, 0
v_readlane_b32 s73, v2, 32
v_readlane_b32 s76, v3, 0
v_readlane_b32 s75, v3, 32
s_mov_b32 s66, 0xaaaaaaaa
s_mov_b32 s67, 0xaaaaaaaa
v_mov_b32 v12, s72
v_mov_b32 v13, s73
v_cndmask_b32 v12, v12, v13, s[66:67]
v_mov_b32 v13, s76
v_mov_b32 v2, s75
v_cndmask_b32 v13, v13, v2, s[66:67]""")
    NV = list(range(N0, N0 + 24))
    for i in range(12): unpack(AA + i, N0 + 2 * i)
    for r in NV: a(f'v_sub_f32 v{r}, v{r}, v12')
    rnd(NV, [2, 3, 4, 5])
    for r in NV: a(f'v_mul_f32 v{r}, v{r}, v13')
    rnd(NV, [2, 3, 4, 5])
    head_tr()
    a(f"""v_lshlrev_b32 v4, 4, v1
v_lshrrev_b32 v5, 5, v1
v_mul_u32_u24 v5, {4608 - 512}, v5
v_add_u32 v5, v5, v4
s_lshl_b32 s72, s74, 2
s_add_u32 s72, s72, {WS_MOD}
s_add_u32 s73, s72, 4608
s_mov_b32 s76, {WS_MOD + 1024}
v_and_b32 v6, 1, v1
v_lshlrev_b32 v6, 4, v6
v_sub_u32 v6, 16, v6
s_lshl_b32 s75, s3, 10
s_add_u32 s75, s75, {L_X1}
v_lshlrev_b32 v7, 3, v1
v_add_u32 v8, s75, v7
v_lshlrev_b32 v10, 5, v14
v_add_u32 v9, s75, v10
s_cmp_eq_u32 s3, 0
s_cbranch_scc1 L_hq_x""")
    tpoll([(XS, 4, 's72', 0), (XS + 4, 4, 's73', 0)], sleep=cfg.modsleep)
    a('s_branch L_hq_j')
    a.label('L_hq_x')
    tpoll([(XS, 4, 's72', 0), (XS + 4, 4, 's73', 0), (XS + 8, 5, 's76', 0)], sleep=cfg.modsleep)
    a(f'ds_write_b64 v7, {vr(XS+8,2)} offset:{L_TD}')
    a.label('L_hq_j')
    stamp('c_mod')
    a(f'ds_write_b64 v8, {vr(XS,2)}\nds_write_b64 v8, {vr(XS+4,2)} offset:512\ns_waitcnt lgkmcnt(0)')
    SAr = list(range(136, 144)); CAr = list(range(XS, XS + 8))
    for k in range(3):
        va, o1, o2 = (9, 256 * k, 512 + 256 * k) if k < 2 else (10, L_TD, L_TD + 256)
        a(f"""ds_read_b128 {vr(CAr[0],4)}, v{va} offset:{o2}
ds_read_b128 {vr(CAr[4],4)}, v{va} offset:{o2+16}
ds_read_b128 {vr(SAr[0],4)}, v{va} offset:{o1}
ds_read_b128 {vr(SAr[4],4)}, v{va} offset:{o1+16}
s_waitcnt lgkmcnt(2)""")
        nv = NV[8 * k:8 * k + 8]
        for r in CAr: a(f'v_lshlrev_b32 v{r}, v6, v{r}')
        for r in CAr: a(f'v_and_b32 v{r}, 0xffff0000, v{r}')
        for r in CAr: a(f'v_add_f32 v{r}, 1.0, v{r}')
        rnd(CAr, [2, 3, 4, 5])
        for i in range(0, 8, 2): a(f'v_pk_mul_f32 {vr(nv[i],2)}, {vr(nv[i],2)}, {vr(CAr[i],2)}')
        rnd(nv, [2, 3, 4, 5])
        a('s_waitcnt lgkmcnt(0)')
        for r in SAr: a(f'v_lshlrev_b32 v{r}, v6, v{r}')
        for r in SAr: a(f'v_and_b32 v{r}, 0xffff0000, v{r}')
        for i in range(0, 8, 2): a(f'v_pk_add_f32 {vr(nv[i],2)}, {vr(nv[i],2)}, {vr(SAr[i],2)}')
        for i in range(4): a(f'v_cvt_pk_bf16_f32 v{AA+4*k+i}, v{nv[2*i]}, v{nv[2*i+1]}')
        if k == 1: a('s_cmp_lg_u32 s3, 0\ns_cbranch_scc1 L_hgemv')
    a('s_branch L_hgemv')
    a.label('L_nohead0')
    a('buffer_load_dwordx2 v[12:13], v0, s[12:15], s76 offen sc1\ns_waitcnt vmcnt(0)')
    get_tag()
    def narrow_issue(srdn, xwave):
        for j in range(8):
            a(f'buffer_load_dwordx4 {vr(RAW+4*j,4)}, v4, s[{srdn}:{srdn+3}], s73 offen{NT}')
            if j < 7: a('s_add_u32 s73, s73, s70')
        X = a.newlabel('NX')
        a(f"""s_cmp_lg_u32 s3, {xwave}
s_cbranch_scc1 {X}
s_lshl_b32 s73, s70, 9
s_add_u32 s73, s73, s72""")
        for j in range(4):
            a(f'buffer_load_dwordx4 {vr(RAW2+4*j,4)}, v5, s[{srdn}:{srdn+3}], s73 offen{NT}')
            if j < 3: a('s_add_u32 s73, s73, s70')
        a.label(X)
    def narrow_addr(v):
        a(f"""v_lshrrev_b32 v{v}, 4, v1
v_and_b32 v3, 3, v1
v_lshlrev_b32 v3, 6, v3
v_lshl_add_u32 v{v}, v{v}, 8, v3
s_lshl_b32 s72, s3, 10
v_add_u32 v{v}, s72, v{v}""")
    def narrow_write(v):
        a('s_mov_b32 exec_lo, 0x00f0000f\ns_mov_b32 exec_hi, 0xf0000f00')
        for e in range(8): a(f'ds_write_b64 v{v}, {vr(RAW+4*e,2)} offset:{L_RED+8*e}')
        a('s_mov_b64 exec, -1')
    def narrow_sum(dst, va):
        for p in range(16): a(f'ds_read_b32 v{TR+p}, v{va} offset:{L_RED+256*p}')
        for p in range(0, 16, 4):
            a(f's_waitcnt lgkmcnt({12-p})')
            a(f'v_pk_add_f32 {vr(TR+p,2)}, {vr(TR+p,2)}, {vr(TR+p+2,2)}')
        a(f"""v_pk_add_f32 {vr(TR,2)}, {vr(TR,2)}, {vr(TR+4,2)}
v_pk_add_f32 {vr(TR+8,2)}, {vr(TR+8,2)}, {vr(TR+12,2)}
v_pk_add_f32 {vr(TR,2)}, {vr(TR,2)}, {vr(TR+8,2)}
v_add_f32 v{dst}, v{TR}, v{TR+1}""")
    a.label('L_head_done')
    stamp('c_head')
    PS = (TR, TR + 4, TR + 8)
    a(f'''s_cmp_lg_u32 s3, 0
s_cbranch_scc1 L_c_noq
v_lshlrev_b32 v4, 4, v1
v_lshlrev_b32 v5, 3, v1
s_and_b32 s72, s2, 31
s_lshl_b32 s72, s72, 10
s_add_u32 s72, s72, {WS_Q}''')
    if cfg.qprio is not None: a(f's_setprio {cfg.qprio}')
    poll_pipe(6, [(4, 's72')], PS[:cfg.qsets], sleep=cfg.qsleep)
    a(f's_setprio {cfg.cprio}')
    a(f'ds_write_b64 v5, v[6:7] offset:{L_Q}')
    lds_inc(L_QF, 0, 2)
    stamp('c_q')
    a.label('L_c_noq')
    a('s_cmp_lg_u32 s3, 3\ns_cbranch_scc1 L_c_nopz')
    for r in range(4): a(f'v_mov_b32 v{4+r}, -1')
    a(f'''v_lshlrev_b32 v3, 4, v1
s_and_b32 s34, s2, 31
s_lshl_b32 s34, s34, 3
s_lshr_b32 s35, s2, 5
s_add_u32 s34, s34, s35
s_lshl_b32 s34, s34, 10
s_add_u32 s34, s34, {WS_OP}
buffer_store_dwordx4 v[4:7], v3, s[12:15], s34 offen sc1
s_cmp_ge_u32 s2, 144
s_cbranch_scc1 L_pz_o
s_mul_i32 s35, s2, 4608
s_add_u32 s35, s35, {WS_YP}
buffer_store_dwordx4 v[4:7], v3, s[12:15], s35 offen sc1
buffer_store_dwordx4 v[4:7], v3, s[12:15], s35 offen offset:1024 sc1
buffer_store_dwordx4 v[4:7], v3, s[12:15], s35 offen offset:2048 sc1
buffer_store_dwordx4 v[4:7], v3, s[12:15], s35 offen offset:3072 sc1
s_add_u32 s35, s35, 4096
s_mov_b32 exec_hi, 0
buffer_store_dwordx4 v[4:7], v3, s[12:15], s35 offen sc1
s_mov_b64 exec, -1
s_branch L_pz_done
L_pz_o:
s_cmp_ge_u32 s2, 216
s_cbranch_scc1 L_pz_done
s_sub_u32 s35, s2, 144
s_mul_i32 s72, s35, 57
s_lshr_b32 s72, s72, 9
s_mul_i32 s73, s72, 9
s_sub_u32 s73, s35, s73
s_mul_i32 s35, s72, 4608
s_lshl_b32 s73, s73, 8
s_add_u32 s35, s35, s73
s_add_u32 s35, s35, {WS_X1P}
v_and_b32 v9, 15, v1
v_lshlrev_b32 v9, 4, v9
v_bfe_u32 v8, v1, 4, 1
v_mul_u32_u24 v8, 2304, v8
v_add_u32 v9, v9, v8
s_mov_b32 exec_hi, 0
buffer_store_dwordx4 v[4:7], v9, s[12:15], s35 offen sc1
s_mov_b64 exec, -1
L_pz_done:
v_mov_b32 v10, s32
v_mov_b32 v11, s33
s_lshl_b32 s35, s2, 4
s_add_u32 s35, s35, {WS_ARR}
s_cmp_lt_u32 s2, 42
s_cbranch_scc1 L_pz_go
s_cmp_ge_u32 s2, 78
s_cbranch_scc1 L_pz_go''')
    lds_spin(L_GO, 1, 0, 2, sleep=4)
    a(f'''L_pz_go:
s_waitcnt vmcnt(0)
s_mov_b64 exec, 1
buffer_store_dwordx2 v[10:11], v0, s[12:15], s35 offen sc1
s_mov_b64 exec, -1
L_c_nopz:''')
    a('s_cmp_lg_u32 s3, 1\ns_cbranch_scc1 L_c_noarr')
    lds_spin(L_CNTA, 8, 0, 2, sleep=8)
    wait_arrival(TR)
    lds_inc(L_ARR, 0, 2)
    a.label('L_c_noarr')
    a('s_cmp_lg_u32 s3, 0\ns_cbranch_scc1 L_c_mid')
    def ml_combine():
        a(f'''v_max_f32_dpp v8, v6, v6 quad_perm:[1,0,3,2] {DPP}
v_max_f32_dpp v8, v8, v8 quad_perm:[2,3,0,1] {DPP}
v_max_f32_dpp v8, v8, v8 row_half_mirror {DPP}
v_sub_f32 v9, v6, v8
v_mul_f32 v9, s82, v9
v_exp_f32 v9, v9
v_mul_f32 v9, v9, v7
v_add_f32_dpp v9, v9, v9 quad_perm:[1,0,3,2] {DPP}
v_add_f32_dpp v9, v9, v9 quad_perm:[2,3,0,1] {DPP}
v_add_f32_dpp v9, v9, v9 row_half_mirror {DPP}''')
    a(f'''s_and_b32 s72, s2, 31
s_lshl_b32 s72, s72, 8
s_add_u32 s72, s72, {WS_ML}
s_lshr_b32 s73, s2, 5
s_lshl_b32 s73, s73, 5
s_add_u32 s73, s73, s72
v_and_b32 v5, 8, v1
v_lshlrev_b32 v3, 1, v5
v_mov_b32 v10, s32
v_mov_b32 v11, s33
v_and_b32 v4, 7, v1
v_lshl_add_u32 v4, v4, 5, v3
v_and_b32 v12, 15, v1
v_lshlrev_b32 v12, 3, v12
s_mov_b32 s82, 0x3fb8aa3b
s_waitcnt vmcnt(0)''')
    lds_spin(L_CNTA, 8, 0, 2)
    a(f'ds_read_b64 v[6:7], v12 offset:{L_MLW}\ns_waitcnt lgkmcnt(0)')
    ml_combine()
    a('''s_mov_b64 exec, 0x101
buffer_store_dwordx4 v[8:11], v3, s[12:15], s73 offen sc1
s_mov_b64 exec, -1''')
    stamp('c_mlpub')
    poll_pipe(6, [(4, 's72')], PS, gap=8)
    ml_combine()
    a(f'''v_rcp_f32 v9, v9
s_mov_b64 exec, 0x101
ds_write_b64 v5, v[8:9] offset:{L_GML}
s_mov_b64 exec, -1''')
    lds_spin(L_ARR, 1, 0, 2)
    lds_inc(L_MLF, 0, 2)
    stamp('c_ml')
    a('s_waitcnt vmcnt(0)')
    a.label('L_c_mid')
    a('''s_cmp_ge_u32 s2, 216
s_cbranch_scc1 L_t_none
s_cmp_ge_u32 s2, 144
s_cbranch_scc1 L_t_o''')
    XW = 3
    PM, PE = 144, 160
    B1R, GBR, B2R = 13, 14, 15
    srd(a, 28, PX, SZ['x']); srd(a, 20, PB1, SZ['b1']); srd(a, 24, PB2, SZ['b2'])
    G = W2
    a(f"""s_cmp_ge_u32 s2, 72
s_cselect_b32 s76, 1, 0
s_mul_i32 s72, s76, 72
s_sub_u32 s77, s2, s72
v_and_b32 v3, 31, v1
v_lshlrev_b32 v4, 4, v3
v_lshlrev_b32 v5, 3, v3
v_lshrrev_b32 v6, 5, v1
v_mul_u32_u24 v6, 1152, v6
v_lshl_add_u32 v7, v3, 3, v6
v_lshl_add_u32 v6, v3, 2, v6
s_lshl_b32 s71, s3, 8
v_lshrrev_b32 v2, 1, v1
v_lshlrev_b32 v2, 1, v2
v_and_b32 v3, 7, v1
v_lshlrev_b32 v9, 1, v3
v_lshlrev_b32 v8, 2, v3
s_lshl_b32 s70, s77, 5
s_add_u32 s70, s70, {WS_MOD2 + 1728*4}
s_lshl_b32 s72, s3, 9
s_add_u32 s72, s72, {WS_MOD2}
s_add_u32 s73, s72, 4608
s_mov_b32 s74, {WS_MOD2 + 2048}
s_mov_b32 s75, {WS_MOD2 + 2048 + 4608}
s_lshl_b32 s4, s2, 6
s_lshl_b32 s5, s77, 4""")
    lds_spin(L_ARR, 1, 0, 3, sleep=4)
    a(f"""buffer_load_dwordx4 {vr(G,4)}, v4, s[12:15], s72 offen sc1
buffer_load_dwordx4 {vr(G+4,4)}, v4, s[12:15], s72 offen offset:2304 sc1
buffer_load_dwordx4 {vr(G+8,4)}, v4, s[12:15], s73 offen sc1
buffer_load_dwordx2 {vr(G+12,2)}, v5, s[12:15], s74 offen sc1
buffer_load_dwordx2 {vr(G+14,2)}, v5, s[12:15], s74 offen offset:2304 sc1
buffer_load_dwordx2 {vr(G+16,2)}, v5, s[12:15], s75 offen sc1
buffer_load_dword v{GBR}, v8, s[12:15], s70 offen sc1
buffer_load_dwordx2 {vr(G+18,2)}, v7, s[28:31], s71 offen
buffer_load_dword v{G+20}, v6, s[28:31], 0 offen offset:1024
buffer_load_ushort v{B1R}, v2, s[20:23], s4 offen
buffer_load_ushort v{B2R}, v9, s[24:27], s5 offen
v_lshrrev_b32 v2, 5, v1
v_lshlrev_b32 v2, 4, v2
v_sub_u32 v2, 16, v2
s_waitcnt vmcnt(0)""")
    gav = [G + i for i in range(4)] + [G + 12, G + 13]
    sbv = [G + 4 + i for i in range(4)] + [G + 14, G + 15]
    cbv = [G + 8 + i for i in range(4)] + [G + 16, G + 17]
    PXr = [PM + i for i in range(4)] + [PE, PE + 1]
    PGr = [PM + 4 + i for i in range(4)] + [PE + 2, PE + 3]
    PCr = [PM + 8 + i for i in range(4)] + [PE + 4, PE + 5]
    PSr = [PM + 12 + i for i in range(4)] + [PE + 6, PE + 7]
    for src, dst in zip(gav + sbv + cbv, PGr + PSr + PCr):
        a(f'v_lshlrev_b32 v{src}, v2, v{src}\nv_and_b32 v{dst}, 0xffff0000, v{src}')
    for r in PCr: a(f'v_add_f32 v{r}, 1.0, v{r}')
    rnd(PCr, [3, 4, 5])
    unpack(G + 18, PM); unpack(G + 19, PM + 2); unpack(G + 20, PE)
    a(f"""s_lshl_b32 s72, s76, 4
s_sub_u32 s72, 16, s72
v_lshlrev_b32 v{GBR}, s72, v{GBR}
v_and_b32 v{GBR}, 0xffff0000, v{GBR}
v_lshlrev_b32 v{B1R}, 16, v{B1R}
v_lshlrev_b32 v{B2R}, 16, v{B2R}""")
    srd(a, 20, PW1, SZ['w1']); srd(a, 24, PW2, SZ['w2'])
    a(f'''s_mov_b32 s70, 9216
v_lshrrev_b32 v2, 2, v1
v_and_b32 v8, 3, v1
v_lshlrev_b32 v8, 4, v8
v_mul_u32_u24 v3, 9216, v2
v_lshl_add_u32 v4, v3, 3, v8
v_lshl_add_u32 v5, v3, 2, v8
s_lshl_b32 s72, s2, 6
s_mul_i32 s73, s3, {128*9216}
s_add_u32 s73, s73, s72
v_lshrrev_b32 v6, 4, v1
v_mul_u32_u24 v6, 1152, v6
v_and_b32 v3, 15, v1
v_lshl_add_u32 v6, v3, 4, v6
s_mul_i32 s74, s2, {32*1152}
s_lshl_b32 s75, s3, 8
s_add_u32 s75, s75, s74''')
    if cfg.touch:
        a(f'''s_mov_b64 exec, 1
buffer_load_dword v{RAW}, v0, s[20:23], s73 offen
buffer_load_dword v{W2}, v0, s[24:27], s75 offen
s_mov_b64 exec, -1''')
    a(f's_cmp_ge_u32 s2, {cfg.w1_from}\ns_cbranch_scc1 L_f_w1')
    lds_spin(L_PUB, 1, 0, 7, sleep=1)
    a.label('L_f_w1')
    narrow_issue(20, XW)
    lds_spin(L_PUB, 1, 0, 7, sleep=1)
    for jj in range(8):
        a(f'buffer_load_dwordx4 {vr(W2+4*jj,4)}, v6, s[24:27], s75 offen{NT}')
        if jj < 7: a('s_add_u32 s75, s75, 4608')
    a(f'''s_cmp_lg_u32 s3, 2
s_cbranch_scc1 L_f_nw2x
s_add_u32 s75, s74, 1024
s_mov_b32 exec_lo, 0x00ff00ff
s_mov_b32 exec_hi, 0x00ff00ff''')
    for jj in range(8):
        a(f'buffer_load_dwordx4 {vr(W2X+4*jj,4)}, v6, s[24:27], s75 offen{NT}')
        if jj < 7: a('s_add_u32 s75, s75, 4608')
    a('s_mov_b64 exec, -1')
    a.label('L_f_nw2x')
    a(f'''v_lshrrev_b32 v2, 5, v1
v_lshlrev_b32 v7, 5, v2
v_mul_u32_u24 v2, 2304, v2
v_and_b32 v3, 31, v1
v_lshl_add_u32 v4, v3, 4, v2
v_lshl_add_u32 v5, v3, 3, v2
s_lshl_b32 s72, s3, 9
v_add_u32 v4, s72, v4
v_add_u32 v5, 2048, v5
s_lshl_b32 s72, s3, 3
v_add_u32 v6, s72, v7
s_lshl_b32 s72, s3, 10
s_add_u32 s72, s72, {L_AV}
v_lshlrev_b32 v8, 3, v1
v_add_u32 v8, s72, v8
v_lshrrev_b32 v2, 2, v1
v_and_b32 v3, 1, v1
v_lshlrev_b32 v9, 8, v3
v_lshl_add_u32 v9, v2, 4, v9
v_add_u32 v9, s72, v9
v_lshlrev_b32 v11, 2, v1
s_lshl_b32 s72, s3, 8
s_add_u32 s72, s72, {L_TD}
v_and_b32 v12, 1, v1
v_lshlrev_b32 v12, 7, v12
v_bfe_u32 v2, v1, 1, 2
v_lshl_add_u32 v12, v2, 5, v12
v_lshrrev_b32 v2, 3, v1
v_lshl_add_u32 v12, v2, 2, v12
v_add_u32 v12, s72, v12''')
    narrow_addr(10)
    for r in range(8): a(f's_mov_b32 s{4+r}, {WS_X1P + 4608*r}')
    SO = lambda r: f's{4+r}'
    srd(a, 28, POUT, SZ['out'])
    a('s_waitcnt vmcnt(8)')
    transpose8(RAW, TR)
    a(f's_cmp_lg_u32 s3, {XW}\ns_cbranch_scc1 L_f_nx')
    transpose4(RAW2, TR2)
    a.label('L_f_nx')
    a('s_waitcnt vmcnt(0)')
    stamp('t_w')
    a(f's_cmp_eq_u32 s3, {XW}\ns_cbranch_scc1 L_f_x')
    def f_phase1(x):
        n = 6 if x else 4
        X = [RAW + i for i in range(4)] + ([RAW2, RAW2 + 1] if x else [])
        prs = [X[i] for i in range(0, n, 2)]
        T3 = [RAW + 8, RAW + 9, RAW + 10]
        grp = [[(RAW + 4 * r, 4, 4, SO(r), 0) for r in range(8)]]
        if x: grp.append([(RAW2 + 2 * r, 2, 5, SO(r), 0) for r in range(8)])
        sum_poll(grp, 2)
        stamp('t_poll')
        rnd(X, T3)
        for i, p in enumerate(prs): a(f'v_pk_mul_f32 {vr(p,2)}, {vr(p,2)}, {vr(PGr[2*i],2)}')
        rnd(X, T3)
        for i, p in enumerate(prs): a(f'v_pk_add_f32 {vr(p,2)}, {vr(p,2)}, {vr(PXr[2*i],2)}')
        rnd(X, T3)
        D = [RAW + 12 + i for i in range(6)]
        a(f'''v_readlane_b32 s72, v{RAW}, 0
v_readlane_b32 s73, v{RAW}, 32
ds_write_b128 v4, {vr(RAW,4)} offset:{L_X1}''')
        if x: a(f'ds_write_b64 v5, {vr(RAW2,2)} offset:{L_X1}')
        K = RAW + 18
        a(f'''v_mov_b32 v{K}, s72
v_mov_b32 v{K+1}, s73
s_mov_b32 s66, 0
s_mov_b32 s67, -1
v_cndmask_b32 v{K}, v{K}, v{K+1}, s[66:67]''')
        for i in range(n): a(f'v_sub_f32 v{D[i]}, v{X[i]}, v{K}')
        S1, S2 = RAW + 20, RAW + 22
        a(f'v_pk_add_f32 {vr(S1,2)}, {vr(D[0],2)}, {vr(D[2],2)}')
        a(f'v_pk_mul_f32 {vr(S2,2)}, {vr(D[0],2)}, {vr(D[0],2)}')
        a(f'v_pk_fma_f32 {vr(S2,2)}, {vr(D[2],2)}, {vr(D[2],2)}, {vr(S2,2)}')
        if x:
            a(f'v_pk_add_f32 {vr(S1,2)}, {vr(S1,2)}, {vr(D[4],2)}')
            a(f'v_pk_fma_f32 {vr(S2,2)}, {vr(D[4],2)}, {vr(D[4],2)}, {vr(S2,2)}')
        a(f'v_add_f32 v{S1}, v{S1}, v{S1+1}\nv_add_f32 v{S2}, v{S2}, v{S2+1}')
        half_reduce([S1, S2], [S1 + 1, S2 + 1])
        a(f'''s_mov_b32 s82, {'0x3baaaaab' if x else '0x3c000000'}
v_mul_f32 v{S1+1}, s82, v{S1}
v_add_f32 v2, v{K}, v{S1+1}
v_fma_f32 v3, -v{S1+1}, v{S1}, v{S2}
s_mov_b32 exec_lo, 1
s_mov_b32 exec_hi, 1
ds_write_b64 v6, v[2:3] offset:{L_STAT}
s_mov_b64 exec, -1
s_waitcnt lgkmcnt(0)
s_barrier''')
        Q = RAW + 24
        a(f'''ds_read_b128 {vr(Q,4)}, v7 offset:{L_STAT}
ds_read_b128 {vr(Q+4,4)}, v7 offset:{L_STAT+16}
s_mov_b32 s72, 0x40400000
s_mov_b32 s73, 0x3de38e39
s_mov_b32 s74, 0x3fc00000
s_mov_b32 s75, 0x43000000
s_mov_b32 s82, 0x3ae38e39
s_waitcnt lgkmcnt(0)''')
        stamp('f_bar1')
        a(f'''v_add_f32 v2, v{Q}, v{Q+2}
v_add_f32 v{Q+1}, v{Q+1}, v{Q+3}
v_add_f32 v2, v2, v{Q+4}
v_add_f32 v{Q+5}, v{Q+5}, v{Q+7}
v_add_f32 v2, v2, v2
v_add_f32 v{Q+1}, v{Q+1}, v{Q+5}
v_fmac_f32 v2, s72, v{Q+6}
v_mul_f32 v2, s73, v2
v_sub_f32 v{Q}, v{Q}, v2
v_sub_f32 v{Q+2}, v{Q+2}, v2
v_sub_f32 v{Q+4}, v{Q+4}, v2
v_sub_f32 v{Q+6}, v{Q+6}, v2
v_mul_f32 v3, v{Q}, v{Q}
v_mul_f32 v{Q+6}, v{Q+6}, v{Q+6}
v_fmac_f32 v3, v{Q+2}, v{Q+2}
v_fmac_f32 v3, v{Q+4}, v{Q+4}
v_fmac_f32 v3, s74, v{Q+6}
v_fmac_f32 v{Q+1}, s75, v3
v_mul_f32 v3, s82, v{Q+1}''')
        ln_finish(2, 3, T3[0])
        for r in X: a(f'v_sub_f32 v{r}, v{r}, v2')
        rnd(X, T3)
        for r in X: a(f'v_mul_f32 v{r}, v{r}, v3')
        rnd(X, T3)
        for i, p in enumerate(prs): a(f'v_pk_mul_f32 {vr(p,2)}, {vr(p,2)}, {vr(PCr[2*i],2)}')
        rnd(X, T3)
        for i, p in enumerate(prs): a(f'v_pk_add_f32 {vr(p,2)}, {vr(p,2)}, {vr(PSr[2*i],2)}')
        a(f'''v_cvt_pk_bf16_f32 v2, v{X[0]}, v{X[1]}
v_cvt_pk_bf16_f32 v3, v{X[2]}, v{X[3]}
ds_write_b64 v8, v[2:3]''')
        if x:
            a(f'''v_cvt_pk_bf16_f32 v{K}, v{X[4]}, v{X[5]}
v_add_u32 v{K+1}, {L_AV + 1024*XW + 512}, v11
ds_write_b32 v{K+1}, v{K}
v_subrev_u32 v{K+1}, {L_AV + 1024*XW}, v9
v_lshrrev_b32 v{K+1}, 1, v{K+1}''')
        a(f's_waitcnt lgkmcnt(0)\nds_read_b128 {vr(A,4)}, v9')
        if x: a(f'ds_read_b64 {vr(A2,2)}, v{K+1} offset:{L_AV + 1024*XW + 512}')
        a('s_waitcnt lgkmcnt(0)')
        for e in range(8): a(f'v_mfma_f32_16x16x32_bf16 {vr(RAW+4*e,4)}, {vr(A,4)}, {vr(TR+4*e,4)}, 0')
        if x:
            for e in range(8): a(f'v_mfma_f32_16x16x16_bf16 {vr(RAW+4*e,4)}, {vr(A2,2)}, {vr(TR2+2*e,2)}, {vr(RAW+4*e,4)}')
    f_phase1(False)
    a('s_branch L_f_j')
    a.label('L_f_x')
    f_phase1(True)
    a.label('L_f_j')
    narrow_write(10)
    MR2, AT2, TV, D2 = 150, 154, RAW, RAW + 8
    a(f'''s_lshl_b32 s72, s3, 8
s_add_u32 s72, s72, {L_TD}
v_bfe_u32 v4, v1, 3, 1
v_lshlrev_b32 v4, 7, v4
v_lshrrev_b32 v5, 4, v1
v_lshl_add_u32 v4, v5, 5, v4
v_add_u32 v4, s72, v4
v_and_b32 v5, 1, v1
v_lshlrev_b32 v5, 4, v5
v_mov_b32 v6, 0xffff
v_lshlrev_b32 v5, v5, v6
v_bfe_u32 v6, v1, 1, 2''')
    for r in range(4): a(f'v_cmp_eq_u32 vcc, {r}, v6\nv_cndmask_b32 v{MR2+r}, 0, v5, vcc')
    a(f'''v_lshrrev_b32 v7, 5, v1
v_mul_u32_u24 v7, 2304, v7
v_and_b32 v8, 15, v1
v_lshl_add_u32 v7, v8, 5, v7
v_bfe_u32 v8, v1, 4, 1
v_lshl_add_u32 v7, v8, 4, v7
s_mul_i32 s72, s2, 4608
s_add_u32 s72, s72, {WS_YP}
s_lshl_b32 s73, s3, 9
s_add_u32 s73, s73, s72
s_waitcnt lgkmcnt(0)
s_barrier''')
    stamp('f_bar2')
    narrow_sum(3, 11)
    rnd([3], 2)
    a(f'v_add_f32 v3, v3, v{B1R}')
    rnd([3], 2)
    a(f'''v_max_f32 v3, 0, v3
v_mul_f32 v3, v3, v3
v_cvt_pk_bf16_f32 v3, v3, v3
ds_write_b32 v12, v3
s_waitcnt lgkmcnt(0)
ds_read_b128 {vr(TV,4)}, v4
ds_read_b128 {vr(TV+4,4)}, v4 offset:16
s_cmp_eq_u32 s3, 2
s_cbranch_scc1 L_f2_x''')
    def f2(extra):
        for jj in range(8):
            at = AT2 + 4 * (jj % 2)
            if jj == 0: a('s_waitcnt lgkmcnt(1)')
            if jj == 4: a('s_waitcnt lgkmcnt(0)')
            if jj == 0:
                for r in range(4): a(f'v_and_b32 v{at+r}, v{TV}, v{MR2+r}')
            if jj + 1 < 8:
                if jj + 1 == 4: a('s_waitcnt lgkmcnt(0)')
                for r in range(4): a(f'v_and_b32 v{AT2+4*((jj+1)%2)+r}, v{TV+jj+1}, v{MR2+r}')
            a(f'v_mfma_f32_16x16x32_bf16 {vr(D2,4)}, {vr(at,4)}, {vr(W2+4*jj,4)}, ' + ('0' if jj == 0 else vr(D2, 4)))
            if extra: a(f'v_mfma_f32_16x16x32_bf16 {vr(D2+4,4)}, {vr(at,4)}, {vr(W2X+4*jj,4)}, ' + ('0' if jj == 0 else vr(D2 + 4, 4)))
        a(f'''v_lshrrev_b32 v2, 1, v1
v_mul_u32_u24 v2, 4608, v2
v_and_b32 v3, 1, v1
v_lshl_add_u32 v2, v3, 4, v2
s_mul_i32 s74, s76, 2304
s_lshl_b32 s75, s77, 5
s_add_u32 s74, s74, s75''')
        a(f'buffer_store_dwordx4 {vr(D2,4)}, v7, s[12:15], s73 offen sc1')
        if extra:
            a(f'''s_mov_b32 exec_lo, 0x00ff00ff
s_mov_b32 exec_hi, 0x00ff00ff
buffer_store_dwordx4 {vr(D2+4,4)}, v7, s[12:15], s72 offen offset:2048 sc1
s_mov_b64 exec, -1''')
    f2(False)
    a('s_branch L_f2_d')
    a.label('L_f2_x')
    f2(True)
    a.label('L_f2_d')
    stamp('t_pub')
    a(f'''s_add_u32 s72, s74, {WS_YP}
s_mul_i32 s73, s3, {32*4608}
s_add_u32 s73, s73, s72
v_lshrrev_b32 v8, 4, v1
v_lshlrev_b32 v8, 5, v8
v_lshl_add_u32 v8, v3, 4, v8
s_lshl_b32 s75, s3, 7
v_add_u32 v8, s75, v8
v_and_b32 v9, 7, v1
v_lshlrev_b32 v10, 2, v9
v_add_u32 v11, s74, v10
v_lshlrev_b32 v9, 1, v9
s_lshr_b32 s74, s74, 1
ds_read_b32 v12, v11 offset:{L_X1}
s_cmp_eq_u32 s3, 1
s_cbranch_scc1 L_fin_x''')
    FA = RAW + 16
    def fin_poll(x):
        L = a.newlabel('FP'); D = a.newlabel('FPD')
        a('s_mov_b32 s80, 0')
        a.label(L)
        a(f'buffer_load_dwordx4 {vr(FA,4)}, v2, s[12:15], s73 offen sc1')
        if x:
            a(f'''s_mov_b32 exec_hi, 0
buffer_load_dwordx4 {vr(FA+4,4)}, v2, s[12:15], s72 offen sc1
s_waitcnt vmcnt(0)
v_pk_add_f32 {vr(FA,2)}, {vr(FA,2)}, {vr(FA+4,2)}
v_pk_add_f32 {vr(FA+2,2)}, {vr(FA+2,2)}, {vr(FA+6,2)}
s_mov_b64 exec, -1''')
        else: a('s_waitcnt vmcnt(0)')
        a(f'''v_cmp_u_f32 s[66:67], v{FA}, v{FA+1}
v_cmp_u_f32 vcc, v{FA+2}, v{FA+3}
s_or_b64 s[66:67], s[66:67], vcc
s_cbranch_scc0 {D}
s_add_u32 s80, s80, 1
s_cmp_gt_u32 s80, {SPIN_LIMIT}
s_cbranch_scc0 {L}''')
        a.label(D)
    fin_poll(False)
    a('s_branch L_fin_d')
    a.label('L_fin_x')
    a(f's_add_u32 s72, s72, {128*4608}')
    fin_poll(True)
    a.label('L_fin_d')
    stamp('f_s5')
    for sh in (2, 4, 8):
        for r in range(4): a(f'v_add_f32_dpp v{FA+r}, v{FA+r}, v{FA+r} row_ror:{sh} {DPP}')
    a(f'''s_mov_b32 exec_lo, 0x00030003
s_mov_b32 exec_hi, 0x00030003
ds_write_b128 v8, {vr(FA,4)} offset:{L_FIN}
s_mov_b64 exec, -1''')
    lds_last(L_CNTF, 4, 0, 2, 'L_fin_end')
    for p in range(16): a(f'ds_read_b32 v{TR+p}, v10 offset:{L_FIN+32*p}')
    for p in range(0, 16, 4):
        a(f's_waitcnt lgkmcnt({12-p})')
        a(f'v_pk_add_f32 {vr(TR+p,2)}, {vr(TR+p,2)}, {vr(TR+p+2,2)}')
    a(f'''v_pk_add_f32 {vr(TR,2)}, {vr(TR,2)}, {vr(TR+4,2)}
v_pk_add_f32 {vr(TR+8,2)}, {vr(TR+8,2)}, {vr(TR+12,2)}
v_pk_add_f32 {vr(TR,2)}, {vr(TR,2)}, {vr(TR+8,2)}
v_add_f32 v{TR}, v{TR}, v{TR+1}''')
    rnd([TR], 2)
    a(f'v_add_f32 v{TR}, v{TR}, v{B2R}')
    rnd([TR], 2)
    a(f'v_mul_f32 v{TR}, v{TR}, v{GBR}')
    rnd([TR], 2)
    a(f'''v_add_f32 v{TR}, v{TR}, v12
v_cvt_pk_bf16_f32 v6, v{TR}, v{TR}
s_mov_b64 exec, 0xff
buffer_store_short v6, v9, s[28:31], s74 offen
s_mov_b64 exec, -1
s_cmp_lg_u32 s2, 0
s_cbranch_scc1 L_fin_end
v_mov_b32 v8, s32
v_mov_b32 v9, s33
s_mov_b32 s70, {WS_EP}
s_mov_b64 exec, 1
buffer_store_dwordx2 v[8:9], v0, s[12:15], s70 offen sc1
s_mov_b64 exec, -1''')
    a.label('L_fin_end')
    chain_end()

    a.label('L_t_o')
    RA, RB, TA, TB = 16, 80, 48, 112
    srd(a, 20, PWO, SZ['wo'])
    a(f'''s_sub_u32 s71, s2, 144
s_mul_i32 s76, s71, 57
s_lshr_b32 s76, s76, 9
s_mul_i32 s73, s76, 9
s_sub_u32 s77, s71, s73
v_lshrrev_b32 v2, 3, v1
v_mul_u32_u24 v2, {8*1152}, v2
v_and_b32 v3, 7, v1
v_lshl_add_u32 v2, v3, 4, v2
s_lshl_b32 s72, s76, 9
s_lshl_b32 s73, s3, 7
s_add_u32 s72, s72, s73
s_mul_i32 s72, s72, 1152
s_lshl_b32 s73, s77, 7
s_add_u32 s72, s72, s73''')
    if cfg.touch:
        a(f'''s_mov_b64 exec, 1
buffer_load_dword v{RA}, v0, s[20:23], s72 offen
s_mov_b64 exec, -1''')
    lds_spin({'A': L_CNTA, 'V': L_CNTV, 'K': L_CNTK}[cfg.wo_at], 8, 0, 3, sleep=2)
    for blk, R in ((0, RA), (1, RB)):
        for j in range(8):
            o = (64 * blk + j) * 1152
            a(f's_add_u32 s73, s72, {o & ~0xfff}')
            a(f'buffer_load_dwordx4 {vr(R+4*j,4)}, v2, s[20:23], s73 offen offset:{o & 0xfff}{NT}')
    a(f'''v_lshrrev_b32 v4, 5, v1
v_lshlrev_b32 v4, 17, v4
v_and_b32 v3, 31, v1
v_lshl_add_u32 v4, v3, 4, v4
s_lshl_b32 s72, s76, 1
s_lshr_b32 s73, s3, 1
s_add_u32 s72, s72, s73
s_lshl_b32 s72, s72, 13
s_and_b32 s73, s3, 1
s_lshl_b32 s73, s73, 9
s_add_u32 s72, s72, s73
s_add_u32 s72, s72, {WS_OP}
s_add_u32 s73, s72, 4096
s_lshl_b32 s74, s3, 10
s_add_u32 s75, s74, {L_AV}
v_lshlrev_b32 v8, 3, v1
v_add_u32 v5, s75, v8
v_lshrrev_b32 v6, 4, v1
v_bfe_u32 v3, v1, 2, 1
v_lshl_add_u32 v6, v6, 1, v3
v_and_b32 v3, 1, v1
v_lshlrev_b32 v3, 8, v3
v_lshl_add_u32 v6, v6, 4, v3
v_add_u32 v6, s75, v6
v_and_b32 v7, 7, v1
v_lshlrev_b32 v7, 6, v7
v_lshrrev_b32 v3, 4, v1
v_lshl_add_u32 v7, v3, 9, v7
v_add_u32 v7, s74, v7
v_lshlrev_b32 v9, 2, v1
s_mul_i32 s74, s76, 4608
s_lshl_b32 s75, s77, 8
s_add_u32 s74, s74, s75
s_add_u32 s74, s74, {WS_X1P}''')
    lds_spin(L_ARR, 1, 0, 3)
    a('s_waitcnt vmcnt(8)')
    transpose8(RA, TA)
    a('s_waitcnt vmcnt(0)')
    stamp('t_w')
    transpose8(RB, TB)
    sum_poll([[(RA + 4 * s, 4, 4, 's72' if s < 4 else 's73', (s % 4) * 1024) for s in range(8)]], 3)
    stamp('t_poll')
    a(f'''v_cvt_pk_bf16_f32 v2, v{RA}, v{RA+1}
v_cvt_pk_bf16_f32 v3, v{RA+2}, v{RA+3}
ds_write_b64 v5, v[2:3]
s_waitcnt lgkmcnt(0)
ds_read_b128 {vr(A,4)}, v6
ds_read_b128 {vr(A+4,4)}, v6 offset:128
s_waitcnt lgkmcnt(1)''')
    for e in range(8): a(f'v_mfma_f32_16x16x32_bf16 {vr(RB+4*e,4)}, {vr(A,4)}, {vr(TA+4*e,4)}, 0')
    a('s_waitcnt lgkmcnt(0)')
    for e in range(8): a(f'v_mfma_f32_16x16x32_bf16 {vr(RB+4*e,4)}, {vr(A+4,4)}, {vr(TB+4*e,4)}, {vr(RB+4*e,4)}')
    a('s_mov_b32 exec_lo, 0xff0000ff\ns_mov_b32 exec_hi, 0')
    for e in range(8): a(f'ds_write_b64 v7, {vr(RB+4*e,2)} offset:{L_RED+8*e}')
    a('s_mov_b64 exec, -1')
    lds_last(L_CNTO, 4, 0, 2, 'L_o_end')
    for p in range(8): a(f'ds_read_b64 {vr(TA+2*p,2)}, v8 offset:{L_RED+512*p}')
    for p in range(0, 8, 2):
        a(f's_waitcnt lgkmcnt({6-p})')
        a(f'v_pk_add_f32 {vr(TA+2*p,2)}, {vr(TA+2*p,2)}, {vr(TA+2*p+2,2)}')
    a(f'''v_pk_add_f32 {vr(TA,2)}, {vr(TA,2)}, {vr(TA+4,2)}
v_pk_add_f32 {vr(TA+8,2)}, {vr(TA+8,2)}, {vr(TA+12,2)}
v_pk_add_f32 {vr(TA,2)}, {vr(TA,2)}, {vr(TA+8,2)}
buffer_store_dword v{TA}, v9, s[12:15], s74 offen sc1
buffer_store_dword v{TA+1}, v9, s[12:15], s74 offen offset:2304 sc1''')
    stamp('t_pub')
    a.label('L_o_end')
    a.label('L_t_none')
    chain_end()

    a.label('L_stream')
    KB = lambda j: 40 + 4 * j
    NL = 16
    VB = lambda j: 24 + 4 * j if j < 4 else (KB(12 + j - 4) if j < 4 + NL else KB(j - 4 - NL))
    a('''s_setprio 1
s_sub_u32 s3, s3, 4
s_and_b32 s70, s2, 31
s_lshl_b32 s70, s70, 21
s_lshr_b32 s71, s2, 5
s_lshl_b32 s71, s71, 18
s_add_u32 s70, s70, s71
s_lshl_b32 s71, s3, 15
s_add_u32 s70, s70, s71
v_and_b32 v2, 3, v1
v_lshlrev_b32 v2, 4, v2
v_bfe_u32 v3, v1, 2, 2
v_lshl_add_u32 v2, v3, 8, v2
v_lshrrev_b32 v3, 4, v1
v_lshl_add_u32 v2, v3, 6, v2
v_lshlrev_b32 v3, 4, v1''')
    for i in range(1, 8): a(f's_add_u32 s{70+i}, s70, {4096*i}')
    a('s_waitcnt lgkmcnt(0)')
    srd(a, 12, PWS, SZ['ws']); srd(a, 4, PK, SZ['k']); srd(a, 8, PV, SZ['v'])
    a(f'''s_and_b32 s34, s2, 31
s_lshl_b32 s34, s34, 3
s_lshr_b32 s35, s2, 5
s_add_u32 s34, s34, s35
s_lshl_b32 s34, s34, 10
s_add_u32 s34, s34, {WS_OP}
''')
    def kload(j): a(f'buffer_load_dwordx4 {vr(KB(j),4)}, v2, s[4:7], s{70+j//4} offen offset:{(j%4)*1024}{NT}')
    def vload(j): a(f'buffer_load_dwordx4 {vr(VB(j),4)}, v3, s[8:11], s{70+j//4} offen offset:{(j%4)*1024}{NT}')
    def vdma(j):
        if j % 4 == 0: a(f's_add_u32 m0, s35, {(j//4 - 1) * 4096}')
        a(f'buffer_load_dwordx4 v3, s[8:11], s{70+j//4} offen offset:{(j%4)*1024}{NT} lds')
    a(f's_lshl_b32 s35, s3, 14\ns_add_u32 s35, s35, {L_V}')
    a('''s_mov_b32 s82, 0x22222222
s_mov_b32 s83, 0x22222222
s_mov_b32 s66, 0x44444444
s_mov_b32 s67, 0x44444444
s_mov_b32 s68, 0x88888888
s_mov_b32 s69, 0x88888888
v_and_b32 v16, 3, v1
v_lshlrev_b32 v16, 4, v16
v_bfe_u32 v17, v1, 2, 1
v_lshl_add_u32 v16, v17, 8, v16
v_lshrrev_b32 v17, 4, v1
v_lshl_add_u32 v16, v17, 6, v16''')
    for j in range(32):
        if j == cfg.pre and not cfg.earlybar: a('s_barrier')
        if cfg.thr_d <= j < cfg.thr_n: a(f's_waitcnt vmcnt({cfg.thr_d-1})')
        kload(j)
    if cfg.kgate:
        lds_inc(L_CNTK, 0, 17)
    for j in range(4): vload(j)
    stamp('s_issued')
    a('s_setprio 0')
    if cfg.kgate:
        lds_spin(L_CNTK, 8, 0, 17, sleep=4)
    NG = NL // 4
    for g in range(NG):
        a(f'''ds_read_b32 v17, v0 offset:{L_QF}
s_waitcnt lgkmcnt(0)
v_readfirstlane_b32 s81, v17
s_mov_b32 s79, {g}
s_cmp_lg_u32 s81, 0
s_cbranch_scc1 L_qk_w{g}''')
        for j in range(4 + 4 * g, 8 + 4 * g): vdma(j)
    lds_spin(L_QF, 1, 0, 17)
    a(f's_mov_b32 s79, {NG}\ns_waitcnt vmcnt({4 + NL})\ns_branch L_qk')
    for g in range(NG):
        a.label(f'L_qk_w{g}')
        a(f's_waitcnt vmcnt({4 + 4 * g})')
        if g + 1 < NG: a('s_branch L_qk')
    a.label('L_qk')
    a(f's_setprio 1\nds_read_b128 v[4:7], v16 offset:{L_Q}\ns_waitcnt lgkmcnt(0)')
    stamp('s_q')
    masks = {1: 's[82:83]', 2: 's[66:67]', 3: 's[68:69]'}
    def qk_post(j):
        D = 16 + 4 * (j % 2); i, c = j // 4, j % 4
        T = 8 + i if c == 0 else 1
        a(f'v_mov_b32_dpp v{T}, v{D} quad_perm:[0,0,0,0] {DPP}')
        for t in (1, 2, 3): a(f'v_add_f32_dpp v{T}, v{D+t}, v{T} quad_perm:[{t},{t},{t},{t}] {DPP}')
        if c: a(f'v_cndmask_b32 v{8+i}, v{8+i}, v1, {masks[c]}')
    a('v_mov_b32 v0, v1')
    for j in range(32):
        a(f'v_mfma_f32_16x16x32_bf16 {vr(16+4*(j%2),4)}, {vr(KB(j),4)}, v[4:7], 0')
        if j: qk_post(j - 1)
    qk_post(31)
    S = list(range(8, 16))
    if not cfg.noround: rnd(S, [16, 17, 18, 19])
    a('s_mov_b32 s82, 0x3db504f3')
    for r in S: a(f'v_mul_f32 v{r}, s82, v{r}')
    if not cfg.noround: rnd(S, [16, 17, 18, 19])
    a(f'''v_max3_f32 v16, v8, v9, v10
v_max3_f32 v17, v11, v12, v13
v_max3_f32 v16, v16, v14, v15
v_max_f32 v16, v16, v17
v_max_f32_dpp v16, v16, v16 quad_perm:[1,0,3,2] {DPP}
v_max_f32_dpp v16, v16, v16 quad_perm:[2,3,0,1] {DPP}
v_mov_b32 v17, v16
v_permlane16_swap_b32 v16, v17
v_max_f32 v16, v16, v17
v_mov_b32 v17, v16
v_permlane32_swap_b32 v16, v17
v_max_f32 v16, v16, v17
s_mov_b32 s83, 0x3fb8aa3b''')
    for k in range(2):
        for i in range(4): a(f'v_sub_f32 v{18+i}, v{S[4*k+i]}, v16')
        for i in range(4): a(f'v_mul_f32 v{18+i}, s83, v{18+i}')
        for i in range(4): a(f'v_exp_f32 v{18+i}, v{18+i}')
        a('v_add_f32 v18, v18, v19\nv_add_f32 v20, v20, v21')
        if k == 0: a('v_add_f32 v17, v18, v20')
        else: a('v_add_f32 v18, v18, v20\nv_add_f32 v17, v17, v18')
    a(f'''v_add_f32_dpp v17, v17, v17 quad_perm:[1,0,3,2] {DPP}
v_add_f32_dpp v17, v17, v17 quad_perm:[2,3,0,1] {DPP}
v_mov_b32 v18, v17
v_permlane16_swap_b32 v17, v18
v_add_f32 v17, v17, v18
v_mov_b32 v18, v17
v_permlane32_swap_b32 v17, v18
v_add_f32 v17, v17, v18
v_lshlrev_b32 v18, 4, v0
s_lshl_b32 s81, s3, 3
v_add_u32 v18, s81, v18
v_mov_b32 v1, 0
s_mov_b64 exec, 0x11
ds_write_b64 v18, v[16:17] offset:{L_MLW}
s_mov_b64 exec, -1''')
    lds_inc(L_CNTA, 1, 19)
    a('s_setprio 0')
    stamp('s_qk')
    for g in range(NG):
        a(f's_cmp_gt_u32 s79, {g}\ns_cbranch_scc1 L_dma{g}')
        for j in range(4 + 4 * g, 8 + 4 * g): vdma(j)
        a.label(f'L_dma{g}')
    for j in range(4 + NL, 32): vload(j)
    lds_inc(L_CNTV, 1, 19)
    stamp('s_vissued')
    MR, AT, OA = 152, 156, 164
    a(f'''v_and_b32 v16, 3, v0
v_bfe_u32 v17, v0, 3, 1
v_lshl_add_u32 v16, v17, 2, v16
v_and_b32 v17, 1, v16
v_lshlrev_b32 v17, 4, v17
v_mov_b32 v18, 0xffff
v_lshlrev_b32 v17, v17, v18
v_lshrrev_b32 v16, 1, v16''')
    for r in range(4):
        a(f'v_cmp_eq_u32 vcc, {r}, v16\nv_cndmask_b32 v{MR+r}, 0, v17, vcc')
    a(f'''v_bfe_u32 v18, v0, 2, 1
v_lshlrev_b32 v18, 3, v18
v_and_b32 v20, 15, v0
v_lshlrev_b32 v20, 5, v20
v_bfe_u32 v17, v0, 4, 1
v_lshl_add_u32 v20, v17, 9, v20
v_lshrrev_b32 v17, 5, v0
v_lshl_add_u32 v20, v17, 4, v20
s_lshl_b32 s81, s3, 10
v_add_u32 v20, s81, v20''')
    a(f'v_add_u32 v21, s35, v3\ns_waitcnt vmcnt({32 - 4 - NL})')
    for j in range(4, 4 + NL): a(f'ds_read_b128 {vr(VB(j),4)}, v21 offset:{(j-4)*1024}')
    lds_spin(L_MLF, 1, 1, 19)
    a(f'ds_read_b64 v[16:17], v18 offset:{L_GML}\ns_waitcnt lgkmcnt(0)')
    stamp('s_ml')
    for r in S: a(f'v_sub_f32 v{r}, v{r}, v16')
    for r in S: a(f'v_mul_f32 v{r}, s83, v{r}')
    for r in S: a(f'v_exp_f32 v{r}, v{r}')
    for r in S: a(f'v_mul_f32 v{r}, v{r}, v17')
    for r in S: a(f'v_cvt_pk_bf16_f32 v{r}, v{r}, v{r}')
    def abuild(j):
        i, c = j // 4, j % 4
        for r in range(4):
            a(f'v_and_b32_dpp v{AT+4*(j%2)+r}, v{8+i}, v{MR+r} quad_perm:[{c},{c},{c},{c}] {DPP}')
    abuild(0)
    for j in range(32):
        if j + 1 < 32: abuild(j + 1)
        if j >= 4 + NL: a(f's_waitcnt vmcnt({31 - j})')
        a(f'v_mfma_f32_16x16x32_bf16 {vr(OA,4)}, {vr(AT+4*(j%2),4)}, {vr(VB(j),4)}, ' + ('0' if j == 0 else vr(OA, 4)))
    a(f'ds_write_b128 v20, {vr(OA,4)} offset:{L_OPL}')
    stamp('s_end')
    lds_last(L_CNTB, 8, 1, 19, 'L_s_end')
    for w in range(8): a(f'ds_read_b128 {vr(24+4*w,4)}, v3 offset:{L_OPL+1024*w}')
    for w in range(0, 8, 2):
        a(f's_waitcnt lgkmcnt({6-w})')
        for h in (0, 2): a(f'v_pk_add_f32 {vr(24+4*w+h,2)}, {vr(24+4*w+h,2)}, {vr(28+4*w+h,2)}')
    for st in (2, 4):
        for w in range(0, 8, 2 * st):
            for h in (0, 2): a(f'v_pk_add_f32 {vr(24+4*w+h,2)}, {vr(24+4*w+h,2)}, {vr(24+4*(w+st)+h,2)}')
    a('buffer_store_dwordx4 v[24:27], v3, s[12:15], s34 offen sc1')
    lds_inc(L_PUB, 1, 19)
    a.label('L_s_end')
    stamp('s_pub')
    if cfg.allw:
        i, j = cfg.allw
        a(f'''s_waitcnt lgkmcnt(0)
v_mov_b32 v2, s{84+2*i}
v_mov_b32 v3, s{84+2*j}
s_lshl_b32 s78, s2, 6
s_lshl_b32 s79, s3, 3
s_add_u32 s78, s78, s79
s_add_u32 s78, s78, {WS_ST}
v_mov_b32 v10, s78
s_mov_b64 exec, 1
buffer_store_dwordx2 v[2:3], v10, s[12:15], 0 offen''')
    elif cfg.stamps:
        a(f's_cmp_lg_u32 s3, {cfg.stwave}\ns_cbranch_scc1 L_end')
        store_stamps(1)
    a.label('L_end')
    a('s_endpgm')
    open(fname, 'w').write(build_file([(kn, a, 168, 102, None)], [(None, 256, 768, LDS_BYTES)]))

SS = dict(s_issued=1, s_q=2, s_qk=3, s_vissued=4, s_ml=5, s_end=6, s_pub=7)
HEAD = dict(start=0, c_karg=1, c_bar=2, c_w=3, c_mod=4, c_head=5, c_q=6, c_ml=7, **SS)
TAIL = dict(start=0, t_w=1, t_poll=2, f_bar1=3, f_bar2=4, t_pub=5, f_s5=6, c_end=7, **SS)
def mk(fname, **kw):
    c = Cfg()
    for k, v in kw.items(): setattr(c, k, v)
    gen(c, fname)
if __name__ == '__main__':
    mk('f11.s', thr_n=10, thr_d=2)
    mk('f11_b.s', thr_n=0)
    mk('f11_nr.s', thr_n=10, thr_d=2, noround=True)
    mk('f11_c.s', thr_n=10, thr_d=2, w1_from=144)
    mk('f11_d.s', thr_n=10, thr_d=2, w1_from=0)
    mk('f11_e.s', thr_n=10, thr_d=3, wo_at='K')
    mk('f11_sth.s', stamps=HEAD, stwave=0, thr_n=10, thr_d=2, ctwave=0)
    mk('f11_stt.s', stamps=TAIL, thr_n=10, thr_d=2, ctwave=2)
    mk('f11_aw.s', stamps=HEAD, allw=(0, 7), thr_n=10, thr_d=2)
```

```python
import sys
from asmlib import *

WS_MOD = 0x00000
WS_MOD2 = 0x04000
WS_Q   = 0x08000
WS_OP  = 0x10000
WS_X1P = 0x50000
WS_ML  = 0x5A000
WS_ARR = 0x5C000
WS_EP  = 0x5F000
WS_YP  = 0x60000
WS_ST  = 0x200000
L_CNTA, L_CNTB, L_QF, L_MLF, L_CNTH, L_CNTO, L_CNTF, L_CNTV, L_GO, L_ARR, L_PUB, L_CNTK, L_CNTL, L_REL = 0, 4, 8, 12, 16, 20, 24, 28, 32, 36, 40, 44, 48, 52
L_GML = 0x40
L_MW = 0x80
L_LW = 0xC0
L_Q   = 0x200
L_OPL = 0x400
L_RED = 0x2400
L_AV  = 0x3400
L_STAT = 0x4400
L_FIN = 0x4480
L_X1  = 0x4800
L_TD  = 0x5A00
L_V = 0x6000
LDS_BYTES = 0x26000
SPIN_LIMIT = 100000

class Cfg:
    nt = True
    stamps = None
    stwave = 0
    ctwave = 0
    pause = 99
    pause_wgs = 164
    vsched = (1, 2, 3, 4)
    codepf = 0
    touch = True
    thr_n = 0
    thr_d = 2
    modsleep = 2
    modgap = 16
    fw_after = True
    allw = None
    kgate = True
    pre_g = 2
    vdepth = 8
    w2_early = False
    s3sleep = 0
    s4sleep = 0
    s5sleep = 0
    depth = 4
    balance = True
    w1_all = True
    debt = dict(Q=6, M=4.6, Mc=0, F=0.8, O=4.0, w1=4.5)
    crit_d = 0
    crit_pre = 1
    crit_max = 32
    vfirst = 2
    noround = False
    pre = 4
    earlybar = True
    w1_from = 78
    wo_at = 'A'
    qprio = None
    qsets = 3
    qsleep = 2
    cprio = 3

NMAX, NCOM = 35, 26
def role_table(cfg):
    D = cfg.debt
    info = []
    for w in range(256):
        p, sp = w & 31, w >> 5
        head, ht, tail, ti = 0, 0, 0, 0
        if sp == 7: head, ht = 1, p
        elif sp == 6: head, ht = 1, 32 + p
        elif sp == 0: head, ht = 2, p
        elif sp == 1 and p < 22: head, ht = 2, 32 + p
        if sp < 4: tail, ti = 1, w
        elif sp == 4: tail, ti = (2, p) if p < 16 else (1, w - 16)
        elif sp == 5: tail, ti = 2, 16 + p
        elif sp == 6 and p >= 8: tail, ti = 2, 40 + p
        crit = int(head == 1 or (head == 2 and ht < 18))
        w1e = int(tail == 1 and (cfg.w1_all or head == 0))
        d = {0: 0, 1: D['Q'], 2: D['M']}[head] + (D['Mc'] if head == 2 and crit else 0)
        d += {0: 0, 1: D['F'], 2: D['O']}[tail] + (D['w1'] if w1e else 0)
        info.append([head, ht, tail, ti, crit, w1e, d])
    tab = [0] * 256
    for p in range(32):
        ws_ = [p + 32 * sp for sp in range(8)]
        ds = [info[w][6] for w in ws_]
        n = [32] * 8
        if cfg.balance:
            n = [NCOM] * 8
            for _ in range(256 - 8 * NCOM):
                k = min((i for i in range(8) if n[i] < NMAX), key=lambda i: n[i] + ds[i])
                n[k] += 1
        st = 0
        for i, w in enumerate(ws_):
            h, ht, t, ti, cr, w1e, d = info[w]
            tab[w] = st | (n[i] - NCOM) << 8 | h << 12 | ht << 14 | t << 20 | ti << 22 | cr << 30 | w1e << 31
            st += n[i]
        assert st == 256
    return tab

def gen(cfg, fname):
    a = Asm()
    kn = NAME + '_kernel'
    NT = ' nt' if cfg.nt else ''
    PX, PK, PV, PWQ, PWO, PW1, PB1, PW2, PB2, PC, PWM, POUT, PDBG, PWS = 36, 38, 40, 42, 44, 48, 50, 52, 54, 56, 58, 60, 62, 64
    DPP = 'row_mask:0xf bank_mask:0xf'
    def stamp(name):
        if cfg.stamps and name in cfg.stamps:
            i = cfg.stamps[name]; a(f's_memrealtime s[{84+2*i}:{85+2*i}]')
    def store_stamps(slot):
        a('s_waitcnt lgkmcnt(0)')
        for i in range(8): a(f'v_mov_b32 v{2+i}, s{84+2*i}')
        a(f'''s_lshl_b32 s78, s2, 6
s_add_u32 s78, s78, {WS_ST + 32*slot}
v_mov_b32 v10, s78
s_mov_b64 exec, 1
buffer_store_dwordx4 v[2:5], v10, s[12:15], 0 offen
buffer_store_dwordx4 v[6:9], v10, s[12:15], 0 offen offset:16
s_mov_b64 exec, -1''')
    def chain_end():
        if cfg.stamps and not cfg.allw:
            a(f's_cmp_lg_u32 s3, {cfg.ctwave}\ns_cbranch_scc1 L_end')
            stamp('c_end'); store_stamps(0)
        a('s_endpgm')

    def lds_spin(off, target, vz, vt, sleep=1):
        L = a.newlabel('SP'); D = a.newlabel('SPD')
        a(f's_mov_b32 s80, 0')
        a.label(L)
        a(f'''ds_read_b32 v{vt}, v{vz} offset:{off}
s_waitcnt lgkmcnt(0)
v_readfirstlane_b32 s81, v{vt}
s_cmp_ge_u32 s81, {target}
s_cbranch_scc1 {D}
s_add_u32 s80, s80, 1
s_cmp_gt_u32 s80, {SPIN_LIMIT}
s_cbranch_scc1 {D}
s_sleep {sleep}
s_branch {L}''')
        a.label(D)
    def lds_inc(off, vz, vt):
        a(f'''s_waitcnt lgkmcnt(0)
v_mov_b32 v{vt}, 1
s_mov_b64 exec, 1
ds_add_u32 v{vz}, v{vt} offset:{off}
s_mov_b64 exec, -1''')
    def lds_last(off, n, vz, vt, skip_label):
        a(f'''v_mov_b32 v{vt}, 1
s_mov_b64 exec, 1
s_waitcnt lgkmcnt(0)
ds_add_rtn_u32 v{vt}, v{vz}, v{vt} offset:{off}
s_mov_b64 exec, -1
s_waitcnt lgkmcnt(0)
v_readfirstlane_b32 s81, v{vt}
s_cmp_lg_u32 s81, {n-1}
s_cbranch_scc1 {skip_label}''')

    def sum_poll(groups, vt):
        L = a.newlabel('PL'); D = a.newlabel('PLD')
        a('s_mov_b32 s80, 0')
        a.label(L)
        for g in groups:
            for (dst, n, va, so, imm) in g:
                op = {1: 'dword', 2: 'dwordx2', 4: 'dwordx4'}[n]
                a(f'buffer_load_{op} {vr(dst, n)}, v{va}, s[12:15], {so} offen offset:{imm} sc1')
        tot = sum(len(g) for g in groups)
        issued = 0
        res = []
        for g in groups:
            k = len(g); n = g[0][1]
            st = 1
            while st < k:
                for i in range(0, k, 2 * st):
                    if i + st < k:
                        if st == 1: a(f's_waitcnt vmcnt({tot - (issued + i + 2)})')
                        for h in range(0, n, 2):
                            a(f'v_pk_add_f32 {vr(g[i][0]+h,2)}, {vr(g[i][0]+h,2)}, {vr(g[i+st][0]+h,2)}')
                st *= 2
            issued += k
            res += [g[0][0] + h for h in range(n)]
        a('s_waitcnt vmcnt(0)')
        first = True
        for i in range(0, len(res), 2):
            if first: a(f'v_cmp_u_f32 s[66:67], v{res[i]}, v{res[i+1]}'); first = False
            else: a(f'v_cmp_u_f32 vcc, v{res[i]}, v{res[i+1]}\ns_or_b64 s[66:67], s[66:67], vcc')
        a(f'''s_cmp_eq_u64 s[66:67], 0
s_cbranch_scc1 {D}
s_sleep {cfg.s4sleep}
s_add_u32 s80, s80, 1
s_cmp_gt_u32 s80, {SPIN_LIMIT}
s_cbranch_scc0 {L}''')
        a.label(D)

    def tpoll(loads, sleep=2, extra=None):
        L = a.newlabel('TP'); D = a.newlabel('TPD')
        a('s_mov_b32 s80, 0')
        a.label(L)
        for (dst, va, so, imm) in loads:
            a(f'buffer_load_dwordx4 {vr(dst,4)}, v{va}, s[12:15], {so} offen offset:{imm} sc1')
        a('s_waitcnt vmcnt(0)')
        for i, (dst, va, so, imm) in enumerate(loads):
            if i == 0: a(f'v_cmp_ne_u64 s[66:67], s[32:33], {vr(dst+2,2)}')
            else: a(f'v_cmp_ne_u64 vcc, s[32:33], {vr(dst+2,2)}\ns_or_b64 s[66:67], s[66:67], vcc')
        a(f'''s_cmp_eq_u64 s[66:67], 0
s_cbranch_scc1 {D}
s_add_u32 s80, s80, 1
s_cmp_gt_u32 s80, {SPIN_LIMIT}
s_cbranch_scc1 {D}
s_sleep {sleep}
s_branch {L}''')
        a.label(D)

    def poll_pipe(dst, loads, sets, gap=16, sleep=2):
        L = a.newlabel('PP'); n = len(sets); m = len(loads)
        Ds = [a.newlabel('PPD') for _ in sets]; E = a.newlabel('PPE')
        def ld(r):
            for k, (va, so) in enumerate(loads): a(f'buffer_load_dwordx4 {vr(r+4*k,4)}, v{va}, s[12:15], {so} offen sc1')
        a('s_mov_b32 s80, 0')
        for i, r in enumerate(sets):
            ld(r)
            if i + 1 < n: a(f's_sleep {gap}')
        a.label(L)
        for i, r in enumerate(sets):
            a(f's_waitcnt vmcnt({(n-1)*m})')
            if m == 1: a(f'v_cmp_ne_u64 vcc, s[32:33], {vr(r+2,2)}\ns_cbranch_vccz {Ds[i]}')
            else:
                a(f'v_cmp_ne_u64 s[66:67], s[32:33], {vr(r+2,2)}')
                for k in range(1, m): a(f'v_cmp_ne_u64 vcc, s[32:33], {vr(r+4*k+2,2)}\ns_or_b64 s[66:67], s[66:67], vcc')
                a(f's_cbranch_scc0 {Ds[i]}')
            a(f's_sleep {sleep}')
            ld(r)
        a(f'''s_add_u32 s80, s80, 1
s_cmp_gt_u32 s80, {SPIN_LIMIT}
s_cbranch_scc0 {L}''')
        for i, r in enumerate(sets):
            a.label(Ds[i])
            for k in range(m): a(f'v_mov_b32 v{dst+2*k}, v{r+4*k}\nv_mov_b32 v{dst+2*k+1}, v{r+4*k+1}')
            if i + 1 < n: a(f's_branch {E}')
        a.label(E)

    def wait_arrival(R):
        L = a.newlabel('AR'); D = a.newlabel('ARD')
        a(f'''s_mov_b32 s80, 0
v_lshlrev_b32 v2, 4, v1
s_mov_b32 s72, {WS_ARR}''')
        a.label(L)
        for i in range(4): a(f'buffer_load_dwordx2 {vr(R+2*i,2)}, v2, s[12:15], s72 offen offset:{1024*i} sc1')
        a('s_waitcnt vmcnt(0)')
        for i in range(4):
            if i == 0: a(f'v_cmp_ne_u64 s[66:67], s[32:33], {vr(R,2)}')
            else: a(f'v_cmp_ne_u64 vcc, s[32:33], {vr(R+2*i,2)}\ns_or_b64 s[66:67], s[66:67], vcc')
        a(f'''s_cbranch_scc0 {D}
s_add_u32 s80, s80, 1
s_cmp_gt_u32 s80, {SPIN_LIMIT}
s_cbranch_scc1 {D}
s_sleep 32
s_branch {L}''')
        a.label(D)

    def transpose8(R, T):
        for d in range(4):
            for dd in range(4):
                a(f'v_perm_b32 v{T+4*(2*d)+dd}, v{R+4*(2*dd+1)+d}, v{R+4*(2*dd)+d}, s78')
                a(f'v_perm_b32 v{T+4*(2*d+1)+dd}, v{R+4*(2*dd+1)+d}, v{R+4*(2*dd)+d}, s79')
    def transpose4(R, T):
        for d in range(4):
            for dd in range(2):
                a(f'v_perm_b32 v{T+2*(2*d)+dd}, v{R+4*(2*dd+1)+d}, v{R+4*(2*dd)+d}, s78')
                a(f'v_perm_b32 v{T+2*(2*d+1)+dd}, v{R+4*(2*dd+1)+d}, v{R+4*(2*dd)+d}, s79')
    def tr8(R, t0, t1):
        P = lambda dd, d: (R + 4 * (2 * dd) + d, R + 4 * (2 * dd + 1) + d)
        for d in range(4):
            x, y = P(d, d)
            a(f'v_perm_b32 v{t0}, v{y}, v{x}, s78\nv_perm_b32 v{y}, v{y}, v{x}, s79\nv_mov_b32 v{x}, v{t0}')
            for dd in range(d + 1, 4):
                x, y = P(dd, d); u, w = P(d, dd)
                a(f'''v_perm_b32 v{t0}, v{y}, v{x}, s78
v_perm_b32 v{t1}, v{y}, v{x}, s79
v_perm_b32 v{x}, v{w}, v{u}, s78
v_perm_b32 v{y}, v{w}, v{u}, s79
v_mov_b32 v{u}, v{t0}
v_mov_b32 v{w}, v{t1}''')
    def rnd(regs, tmps):
        prs = [(regs[i], regs[i + 1] if i + 1 < len(regs) else None) for i in range(0, len(regs), 2)]
        if isinstance(tmps, int): tmps = [tmps]
        for k in range(0, len(prs), len(tmps)):
            grp = prs[k:k + len(tmps)]
            for (x, y), t in zip(grp, tmps): a(f'v_cvt_pk_bf16_f32 v{t}, v{x}, v{y if y is not None else x}')
            for (x, y), t in zip(grp, tmps):
                a(f'v_lshlrev_b32 v{x}, 16, v{t}')
                if y is not None: a(f'v_and_b32 v{y}, 0xffff0000, v{t}')
    def unpack(src, dst):
        a(f'v_and_b32 v{dst+1}, 0xffff0000, v{src}')
        a(f'v_lshlrev_b32 v{dst}, 16, v{src}')
    def half_reduce(regs, tmps, op='v_add_f32'):
        for sh in (8, 4, 2, 1):
            for r in regs: a(f'{op}_dpp v{r}, v{r}, v{r} row_ror:{sh} {DPP}')
        for r, t in zip(regs, tmps): a(f'v_mov_b32 v{t}, v{r}')
        for r, t in zip(regs, tmps): a(f'v_permlane16_swap_b32 v{r}, v{t}')
        for r, t in zip(regs, tmps): a(f'{op} v{r}, v{r}, v{t}')
    def ln_finish(mean, var, t):
        rnd([mean, var], t)
        a(f'v_add_f32 v{var}, 0x3727c5ac, v{var}')
        rnd([var], t)
        a(f'v_sqrt_f32 v{var}, v{var}')
        rnd([var], t)
        a(f'v_rcp_f32 v{var}, v{var}')

    a(f'''s_cmp_ge_u32 s2, 256
s_cbranch_scc1 L_end
s_load_dwordx16 s[36:51], s[0:1], 0
s_load_dwordx8 s[52:59], s[0:1], 64
s_load_dwordx4 s[60:63], s[0:1], 96
s_load_dwordx2 s[64:65], s[0:1], 112
s_getpc_b64 s[66:67]
L_pc0:
s_lshl_b32 s68, s2, 2
s_add_u32 s66, s66, L_table-L_pc0
s_addc_u32 s67, s67, 0
s_load_dword s100, s[66:67], s68
v_lshrrev_b32 v2, 6, v0
v_and_b32 v1, 63, v0
v_readfirstlane_b32 s3, v2
v_mov_b32 v0, 0''')
    stamp('start')
    if cfg.earlybar:
        a('''s_cmp_lg_u32 s3, 0
s_cbranch_scc1 L_noinit0
v_lshlrev_b32 v2, 2, v1
ds_write_b32 v2, v0
s_waitcnt lgkmcnt(0)
L_noinit0:
s_barrier''')
    a('''s_cmp_ge_u32 s3, 4
s_cbranch_scc1 L_stream''')
    RAW, TR, RAW2, TR2, W2, W2X = 16, 48, 80, 96, 112, 80
    A, A2 = 144, 148
    RA, RB, RC, ACC, AA = 16, 48, 80, 112, 144
    XS = 156
    a(f"""s_setprio {cfg.cprio}
s_mov_b32 s78, 0x05040100
s_mov_b32 s79, 0x07060302
s_waitcnt lgkmcnt(0)
s_bfe_u32 s83, s100, 0x2000c
s_bfe_u32 s71, s100, 0x6000e
s_bfe_u32 s69, s100, 0x20014
s_bfe_u32 s101, s100, 0x80016
s_lshl_b32 s74, s3, 1
s_min_u32 s75, s3, 1
s_add_u32 s74, s74, s75
s_mov_b32 s70, 8192
s_cmp_eq_u32 s83, 2
s_cselect_b32 s70, 6912, s70
v_lshrrev_b32 v14, 4, v1
v_bfe_u32 v2, v1, 2, 1
v_lshl_add_u32 v14, v14, 1, v2
v_and_b32 v2, 1, v1
v_mul_u32_u24 v2, 1152, v2
v_lshl_add_u32 v6, v14, 4, v2
v_lshrrev_b32 v3, 3, v1
v_mul_lo_u32 v3, v3, s70
v_and_b32 v8, 7, v1
v_lshlrev_b32 v8, 4, v8
v_lshl_add_u32 v4, v3, 3, v8
s_lshl_b32 s72, s71, 7
s_lshl_b32 s73, s74, 6
s_mul_i32 s73, s73, s70
s_add_u32 s73, s73, s72
s_mul_i32 s75, s70, 56
s_lshl_b32 s74, s74, 7
s_waitcnt lgkmcnt(0)""")
    stamp('c_karg')
    srd(a, 12, PWS, SZ['ws'])
    a('s_cmp_lg_u32 s3, 3\ns_cbranch_scc1 L_c_nopz0')
    for r in range(4): a(f'v_mov_b32 v{112+r}, -1')
    a(f'''v_lshlrev_b32 v116, 4, v1
s_and_b32 s34, s2, 31
s_lshl_b32 s34, s34, 3
s_lshr_b32 s35, s2, 5
s_add_u32 s34, s34, s35
s_lshl_b32 s34, s34, 10
s_add_u32 s34, s34, {WS_OP}
buffer_store_dwordx4 v[112:115], v116, s[12:15], s34 offen sc1
s_cmp_lg_u32 s69, 1
s_cbranch_scc1 L_pz_o
s_mul_i32 s35, s101, 4608
s_add_u32 s35, s35, {WS_YP}
buffer_store_dwordx4 v[112:115], v116, s[12:15], s35 offen sc1
buffer_store_dwordx4 v[112:115], v116, s[12:15], s35 offen offset:1024 sc1
buffer_store_dwordx4 v[112:115], v116, s[12:15], s35 offen offset:2048 sc1
buffer_store_dwordx4 v[112:115], v116, s[12:15], s35 offen offset:3072 sc1
s_add_u32 s35, s35, 4096
s_mov_b32 exec_hi, 0
buffer_store_dwordx4 v[112:115], v116, s[12:15], s35 offen sc1
s_mov_b64 exec, -1
s_branch L_pz_done
L_pz_o:
s_cmp_lg_u32 s69, 2
s_cbranch_scc1 L_pz_done
s_mov_b32 s35, s101
s_mul_i32 s66, s35, 57
s_lshr_b32 s66, s66, 9
s_mul_i32 s67, s66, 9
s_sub_u32 s67, s35, s67
s_mul_i32 s35, s66, 4608
s_lshl_b32 s67, s67, 8
s_add_u32 s35, s35, s67
s_add_u32 s35, s35, {WS_X1P}
v_and_b32 v117, 15, v1
v_lshlrev_b32 v117, 4, v117
v_bfe_u32 v118, v1, 4, 1
v_mul_u32_u24 v118, 2304, v118
v_add_u32 v117, v117, v118
s_mov_b32 exec_hi, 0
buffer_store_dwordx4 v[112:115], v117, s[12:15], s35 offen sc1
s_mov_b64 exec, -1
L_pz_done:
L_c_nopz0:''')
    a(f"""s_mov_b32 s76, {WS_EP}
s_cmp_eq_u32 s83, 0
s_cbranch_scc1 L_nohead0
s_cmp_eq_u32 s83, 2
s_cselect_b32 s20, s{PWM}, s{PWQ}
s_cselect_b32 s21, s{PWM+1}, s{PWQ+1}
s_mov_b32 s22, {SZ['wq']}
s_cselect_b32 s22, {SZ['wmod']}, s22
s_mov_b32 s23, 0x00020000
s_cselect_b32 s28, s{PC}, s{PX}
s_cselect_b32 s29, s{PC+1}, s{PX+1}
s_mov_b32 s30, 2304
s_mov_b32 s31, 0x00020000
buffer_load_dwordx4 {vr(AA,4)}, v6, s[28:31], s74 offen
buffer_load_dwordx4 {vr(AA+4,4)}, v6, s[28:31], s74 offen offset:128
buffer_load_dwordx4 {vr(AA+8,4)}, v6, s[28:31], s74 offen offset:256
buffer_load_dwordx2 v[12:13], v0, s[12:15], s76 offen sc1
s_cbranch_scc1 L_h_w
v_lshrrev_b32 v2, 5, v1
v_mul_u32_u24 v2, 1152, v2
v_and_b32 v3, 31, v1
v_lshl_add_u32 v2, v3, 4, v2
buffer_load_dwordx4 {vr(XS,4)}, v2, s[28:31], 0 offen
buffer_load_dwordx4 {vr(XS+4,4)}, v2, s[28:31], 0 offen offset:512
v_mov_b32 v{XS+8}, 0
v_mov_b32 v{XS+9}, 0
v_mov_b32 v{XS+10}, 0
v_mov_b32 v{XS+11}, 0
s_mov_b32 exec_lo, 0xff
s_mov_b32 exec_hi, 0xff
buffer_load_dwordx4 {vr(XS+8,4)}, v2, s[28:31], 0 offen offset:1024
s_mov_b64 exec, -1
L_h_w:""")
    def blk_loads(R, last):
        for j in range(8):
            a(f'buffer_load_dwordx4 {vr(R+4*j,4)}, v4, s[20:23], s73 offen{NT}')
            a('s_add_u32 s73, s73, s70')
        if not last: a('s_add_u32 s73, s73, s75')
    blk_loads(RA, False); blk_loads(RB, False)
    a('s_cmp_lg_u32 s3, 0\ns_cbranch_scc1 L_h_w2')
    blk_loads(RC, True)
    a.label('L_h_w2')
    stamp('c_bar')
    def get_tag():
        a("""v_readfirstlane_b32 s32, v12
v_readfirstlane_b32 s33, v13
s_add_u32 s32, s32, 1
s_addc_u32 s33, s33, 0""")
    a('s_waitcnt vmcnt(16)')
    get_tag()
    a('s_cmp_eq_u32 s83, 1\ns_cbranch_scc1 L_hq')
    a('s_mov_b32 s82, 0xbfb8aa3b')
    for r in range(AA, AA + 12, 2):
        unpack(r, 2); unpack(r + 1, 4)
        for i in range(4): a(f'v_mul_f32 v{6+i}, s82, v{2+i}')
        for i in range(4): a(f'v_exp_f32 v{6+i}, v{6+i}')
        for i in range(4): a(f'v_add_f32 v{6+i}, 1.0, v{6+i}')
        for i in range(4): a(f'v_rcp_f32 v{6+i}, v{6+i}')
        for i in range(4): a(f'v_mul_f32 v{2+i}, v{2+i}, v{6+i}')
        a(f'v_cvt_pk_bf16_f32 v{r}, v2, v3\nv_cvt_pk_bf16_f32 v{r+1}, v4, v5')
    def head_tr():
        a('s_waitcnt vmcnt(8)')
        tr8(RA, 2, 3)
        a('s_waitcnt vmcnt(0)')
        stamp('c_w')
        tr8(RB, 2, 3)
        X = a.newlabel('HT')
        a(f's_cmp_lg_u32 s3, 0\ns_cbranch_scc1 {X}')
        tr8(RC, 2, 3)
        a.label(X)
    head_tr()
    a.label('L_hgemv')
    def g8_addr(v, t):
        a(f"""v_and_b32 v{v}, 7, v1
v_lshlrev_b32 v{v}, 6, v{v}
v_lshrrev_b32 v{t}, 4, v1
v_lshl_add_u32 v{v}, v{t}, 9, v{v}
s_lshl_b32 s72, s3, 10
v_add_u32 v{v}, s72, v{v}""")
    def g8_write(v, D):
        a('s_mov_b32 exec_lo, 0xff0000ff\ns_mov_b32 exec_hi, 0')
        for e in range(8): a(f'ds_write_b64 v{v}, {vr(D+4*e,2)} offset:{L_RED+8*e}')
        a('s_mov_b64 exec, -1')
    def g8_sum(T, va):
        for p in range(8): a(f'ds_read_b64 {vr(T+2*p,2)}, v{va} offset:{L_RED+512*p}')
        for p in range(0, 8, 2):
            a(f's_waitcnt lgkmcnt({6-p})')
            a(f'v_pk_add_f32 {vr(T+2*p,2)}, {vr(T+2*p,2)}, {vr(T+2*p+2,2)}')
        a(f"""v_pk_add_f32 {vr(T,2)}, {vr(T,2)}, {vr(T+4,2)}
v_pk_add_f32 {vr(T+8,2)}, {vr(T+8,2)}, {vr(T+12,2)}
v_pk_add_f32 {vr(T,2)}, {vr(T,2)}, {vr(T+8,2)}""")
    for e in range(8): a(f'v_mfma_f32_16x16x32_bf16 {vr(ACC+4*e,4)}, {vr(AA,4)}, {vr(RA+4*e,4)}, 0')
    for e in range(8): a(f'v_mfma_f32_16x16x32_bf16 {vr(ACC+4*e,4)}, {vr(AA+4,4)}, {vr(RB+4*e,4)}, {vr(ACC+4*e,4)}')
    a('s_cmp_lg_u32 s3, 0\ns_cbranch_scc1 L_hg2')
    for e in range(8): a(f'v_mfma_f32_16x16x32_bf16 {vr(ACC+4*e,4)}, {vr(AA+8,4)}, {vr(RC+4*e,4)}, {vr(ACC+4*e,4)}')
    a.label('L_hg2')
    g8_addr(2, 3)
    a('v_lshlrev_b32 v9, 3, v1')
    g8_write(2, ACC)
    lds_last(L_CNTH, 4, 0, 2, 'L_head_done')
    g8_sum(RA, 9)
    a(f"""v_mov_b32 v6, s32
v_mov_b32 v7, s33
s_cmp_eq_u32 s83, 2
s_cbranch_scc1 L_hs_m
v_mov_b32 v10, s32
v_mov_b32 v11, s33
v_mov_b32_dpp v2, v{RA} quad_perm:[1,0,3,2] {DPP}
v_mov_b32_dpp v3, v{RA+1} quad_perm:[1,0,3,2] {DPP}
v_cvt_pk_bf16_f32 v4, v{RA}, v2
v_cvt_pk_bf16_f32 v8, v{RA+1}, v3
v_mov_b32_dpp v5, v4 quad_perm:[2,3,0,1] {DPP}
v_mov_b32_dpp v9, v8 quad_perm:[2,3,0,1] {DPP}
v_lshlrev_b32 v2, 2, v1
s_lshl_b32 s72, s71, 8
s_add_u32 s72, s72, {WS_Q}
s_add_u32 s73, s72, 16384
s_mov_b32 exec_lo, 0x11111111
s_mov_b32 exec_hi, 0x11111111
buffer_store_dwordx4 v[4:7], v2, s[12:15], s72 offen sc1
buffer_store_dwordx4 v[8:11], v2, s[12:15], s73 offen sc1
s_mov_b64 exec, 1
v_mov_b32 v2, 1
ds_write_b32 v0, v2 offset:{L_REL}
s_mov_b64 exec, -1
s_branch L_head_done
L_hs_m:
v_cvt_pk_bf16_f32 v4, v{RA}, v{RA+1}
s_cmp_ge_u32 s71, 18
s_cbranch_scc1 L_hs_m2
v_mov_b32_dpp v5, v4 quad_perm:[1,0,3,2] {DPP}
s_lshl_b32 s72, s71, 9
s_add_u32 s72, s72, {WS_MOD}
s_mov_b32 exec_lo, 0x55555555
s_mov_b32 exec_hi, 0x55555555
buffer_store_dwordx4 v[4:7], v9, s[12:15], s72 offen sc1
s_mov_b64 exec, 1
v_mov_b32 v2, 1
ds_write_b32 v0, v2 offset:{L_REL}
s_mov_b64 exec, -1
s_branch L_head_done
L_hs_m2:
v_lshlrev_b32 v2, 2, v1
s_lshl_b32 s72, s71, 8
s_add_u32 s72, s72, {WS_MOD2 - 18*256}
buffer_store_dword v4, v2, s[12:15], s72 offen sc1
s_waitcnt vmcnt(0)""")
    lds_inc(L_GO, 0, 2)
    a('s_branch L_head_done')
    a.label('L_hq')
    N0 = ACC
    for i in range(12): unpack(XS + i, N0 + 2 * i)
    a(f'v_pk_add_f32 v[2:3], {vr(N0,2)}, {vr(N0+2,2)}')
    for i in range(4, 24, 2): a(f'v_pk_add_f32 v[2:3], v[2:3], {vr(N0+i,2)}')
    a('v_add_f32 v2, v2, v3')
    half_reduce([2], [3])
    a('s_mov_b32 s82, 0x3ae38e39\nv_mul_f32 v2, s82, v2')
    a('v_and_b32 v4, 31, v1\nv_cmp_gt_u32 vcc, 8, v4')
    for i in range(24): a(f'v_sub_f32 v{N0+i}, v{N0+i}, v2')
    for i in range(16, 24): a(f'v_cndmask_b32 v{N0+i}, 0, v{N0+i}, vcc')
    a(f'v_mul_f32 v3, v{N0}, v{N0}')
    for i in range(1, 24): a(f'v_fmac_f32 v3, v{N0+i}, v{N0+i}')
    half_reduce([3], [4])
    a('v_mul_f32 v3, s82, v3')
    ln_finish(2, 3, 4)
    a("""v_readlane_b32 s72, v2, 0
v_readlane_b32 s73, v2, 32
v_readlane_b32 s76, v3, 0
v_readlane_b32 s75, v3, 32
s_mov_b32 s66, 0xaaaaaaaa
s_mov_b32 s67, 0xaaaaaaaa
v_mov_b32 v12, s72
v_mov_b32 v13, s73
v_cndmask_b32 v12, v12, v13, s[66:67]
v_mov_b32 v13, s76
v_mov_b32 v2, s75
v_cndmask_b32 v13, v13, v2, s[66:67]""")
    NV = list(range(N0, N0 + 24))
    for i in range(12): unpack(AA + i, N0 + 2 * i)
    for r in NV: a(f'v_sub_f32 v{r}, v{r}, v12')
    rnd(NV, [2, 3, 4, 5])
    for r in NV: a(f'v_mul_f32 v{r}, v{r}, v13')
    rnd(NV, [2, 3, 4, 5])
    head_tr()
    a('s_cmp_lg_u32 s3, 3\ns_cbranch_scc1 L_q_nopz')
    a(f'''v_mov_b32 v10, s32
v_mov_b32 v11, s33
s_lshl_b32 s35, s2, 4
s_add_u32 s35, s35, {WS_ARR}
s_branch L_q_pzgo''')
    lds_spin(L_GO, 1, 0, 2, sleep=4)
    a(f'''L_q_pzgo:
s_waitcnt vmcnt(0)
s_mov_b64 exec, 1
buffer_store_dwordx2 v[10:11], v0, s[12:15], s35 offen sc1
s_mov_b64 exec, -1''')
    lds_inc(L_CNTA, 0, 2)
    a.label('L_q_nopz')
    a(f"""v_lshlrev_b32 v4, 4, v1
v_lshrrev_b32 v5, 5, v1
v_mul_u32_u24 v5, {4608 - 512}, v5
v_add_u32 v5, v5, v4
s_lshl_b32 s72, s74, 2
s_add_u32 s72, s72, {WS_MOD}
s_add_u32 s73, s72, 4608
s_mov_b32 s76, {WS_MOD + 1024}
v_and_b32 v6, 1, v1
v_lshlrev_b32 v6, 4, v6
v_sub_u32 v6, 16, v6
s_lshl_b32 s75, s3, 10
s_add_u32 s75, s75, {L_X1}
v_lshlrev_b32 v7, 3, v1
v_add_u32 v8, s75, v7
v_lshlrev_b32 v10, 5, v14
v_add_u32 v9, s75, v10
s_cmp_eq_u32 s3, 0
s_cbranch_scc1 L_hq_x""")
    tpoll([(XS, 4, 's72', 0), (XS + 4, 4, 's73', 0)], sleep=cfg.modsleep)
    a('s_branch L_hq_j')
    a.label('L_hq_x')
    tpoll([(XS, 4, 's72', 0), (XS + 4, 4, 's73', 0), (XS + 8, 5, 's76', 0)], sleep=cfg.modsleep)
    a(f'ds_write_b64 v7, {vr(XS+8,2)} offset:{L_TD}')
    a.label('L_hq_j')
    stamp('c_mod')
    a(f'ds_write_b64 v8, {vr(XS,2)}\nds_write_b64 v8, {vr(XS+4,2)} offset:512\ns_waitcnt lgkmcnt(0)')
    SAr = list(range(136, 144)); CAr = list(range(XS, XS + 8))
    for k in range(3):
        va, o1, o2 = (9, 256 * k, 512 + 256 * k) if k < 2 else (10, L_TD, L_TD + 256)
        a(f"""ds_read_b128 {vr(CAr[0],4)}, v{va} offset:{o2}
ds_read_b128 {vr(CAr[4],4)}, v{va} offset:{o2+16}
ds_read_b128 {vr(SAr[0],4)}, v{va} offset:{o1}
ds_read_b128 {vr(SAr[4],4)}, v{va} offset:{o1+16}
s_waitcnt lgkmcnt(2)""")
        nv = NV[8 * k:8 * k + 8]
        for r in CAr: a(f'v_lshlrev_b32 v{r}, v6, v{r}')
        for r in CAr: a(f'v_and_b32 v{r}, 0xffff0000, v{r}')
        for r in CAr: a(f'v_add_f32 v{r}, 1.0, v{r}')
        rnd(CAr, [2, 3, 4, 5])
        for i in range(0, 8, 2): a(f'v_pk_mul_f32 {vr(nv[i],2)}, {vr(nv[i],2)}, {vr(CAr[i],2)}')
        rnd(nv, [2, 3, 4, 5])
        a('s_waitcnt lgkmcnt(0)')
        for r in SAr: a(f'v_lshlrev_b32 v{r}, v6, v{r}')
        for r in SAr: a(f'v_and_b32 v{r}, 0xffff0000, v{r}')
        for i in range(0, 8, 2): a(f'v_pk_add_f32 {vr(nv[i],2)}, {vr(nv[i],2)}, {vr(SAr[i],2)}')
        for i in range(4): a(f'v_cvt_pk_bf16_f32 v{AA+4*k+i}, v{nv[2*i]}, v{nv[2*i+1]}')
        if k == 1: a('s_cmp_lg_u32 s3, 0\ns_cbranch_scc1 L_hgemv')
    a('s_branch L_hgemv')
    a.label('L_nohead0')
    a('buffer_load_dwordx2 v[12:13], v0, s[12:15], s76 offen sc1')
    if cfg.codepf:
        a(f"""s_sub_u32 s72, s2, 160
s_cmp_ge_u32 s72, 16
s_cbranch_scc1 L_nopf
s_getpc_b64 s[72:73]
L_pc:
s_sub_u32 s72, s72, L_pc-{kn}
s_subb_u32 s73, s73, 0
v_lshlrev_b32 v2, 4, v1
s_lshl_b32 s74, s3, 10
v_add_u32 v2, s74, v2""")
        for i in range((cfg.codepf + 4095) // 4096):
            a(f"""v_cmp_gt_u32 vcc, {cfg.codepf - 16 - 4096*i + 1}, v2
s_and_saveexec_b64 s[66:67], vcc
s_cbranch_execz L_pf{i}
global_load_dwordx4 {vr(RAW+4*i,4)}, v2, s[72:73]
L_pf{i}:
s_mov_b64 exec, -1
s_add_u32 s72, s72, 4096
s_addc_u32 s73, s73, 0""")
        a.label('L_nopf')
    a('s_waitcnt vmcnt(0)')
    get_tag()
    def narrow_issue(srdn, xwave):
        for j in range(8):
            a(f'buffer_load_dwordx4 {vr(RAW+4*j,4)}, v4, s[{srdn}:{srdn+3}], s73 offen{NT}')
            if j < 7: a('s_add_u32 s73, s73, s70')
        X = a.newlabel('NX')
        a(f"""s_cmp_lg_u32 s3, {xwave}
s_cbranch_scc1 {X}
s_lshl_b32 s73, s70, 9
s_add_u32 s73, s73, s72""")
        for j in range(4):
            a(f'buffer_load_dwordx4 {vr(RAW2+4*j,4)}, v5, s[{srdn}:{srdn+3}], s73 offen{NT}')
            if j < 3: a('s_add_u32 s73, s73, s70')
        a.label(X)
    def narrow_addr(v):
        a(f"""v_lshrrev_b32 v{v}, 4, v1
v_and_b32 v3, 3, v1
v_lshlrev_b32 v3, 6, v3
v_lshl_add_u32 v{v}, v{v}, 8, v3
s_lshl_b32 s72, s3, 10
v_add_u32 v{v}, s72, v{v}""")
    def narrow_write(v):
        a('s_mov_b32 exec_lo, 0x00f0000f\ns_mov_b32 exec_hi, 0xf0000f00')
        for e in range(8): a(f'ds_write_b64 v{v}, {vr(RAW+4*e,2)} offset:{L_RED+8*e}')
        a('s_mov_b64 exec, -1')
    def narrow_sum(dst, va):
        for p in range(16): a(f'ds_read_b32 v{TR+p}, v{va} offset:{L_RED+256*p}')
        for p in range(0, 16, 4):
            a(f's_waitcnt lgkmcnt({12-p})')
            a(f'v_pk_add_f32 {vr(TR+p,2)}, {vr(TR+p,2)}, {vr(TR+p+2,2)}')
        a(f"""v_pk_add_f32 {vr(TR,2)}, {vr(TR,2)}, {vr(TR+4,2)}
v_pk_add_f32 {vr(TR+8,2)}, {vr(TR+8,2)}, {vr(TR+12,2)}
v_pk_add_f32 {vr(TR,2)}, {vr(TR,2)}, {vr(TR+8,2)}
v_add_f32 v{dst}, v{TR}, v{TR+1}""")
    a.label('L_head_done')
    stamp('c_head')
    PS = (TR, TR + 4, TR + 8)
    a(f'''s_cmp_lg_u32 s3, 0
s_cbranch_scc1 L_c_noq
v_lshlrev_b32 v4, 4, v1
v_lshlrev_b32 v5, 3, v1
s_and_b32 s72, s2, 31
s_lshl_b32 s72, s72, 10
s_add_u32 s72, s72, {WS_Q}''')
    if cfg.qprio is not None: a(f's_setprio {cfg.qprio}')
    poll_pipe(6, [(4, 's72')], PS[:cfg.qsets], sleep=cfg.qsleep)
    a(f's_setprio {cfg.cprio}')
    a(f'ds_write_b64 v5, v[6:7] offset:{L_Q}')
    lds_inc(L_QF, 0, 2)
    stamp('c_q')
    a.label('L_c_noq')
    a('s_cmp_eq_u32 s83, 1\ns_cbranch_scc1 L_c_nopz')
    a('s_cmp_lg_u32 s3, 3\ns_cbranch_scc1 L_c_nopz')
    a(f'''v_mov_b32 v10, s32
v_mov_b32 v11, s33
s_lshl_b32 s35, s2, 4
s_add_u32 s35, s35, {WS_ARR}
s_cmp_lg_u32 s83, 2
s_cbranch_scc1 L_pz_go
s_bitcmp1_b32 s100, 30
s_cbranch_scc1 L_pz_go''')
    lds_spin(L_GO, 1, 0, 2, sleep=4)
    a(f'''L_pz_go:
s_waitcnt vmcnt(0)
s_mov_b64 exec, 1
buffer_store_dwordx2 v[10:11], v0, s[12:15], s35 offen sc1
s_mov_b64 exec, -1''')
    lds_inc(L_CNTA, 0, 2)
    a.label('L_c_nopz')
    a('s_cmp_lg_u32 s3, 1\ns_cbranch_scc1 L_c_noarr')
    lds_spin(L_QF, 1, 0, 2, sleep=8)
    wait_arrival(TR)
    lds_inc(L_ARR, 0, 2)
    a.label('L_c_noarr')
    a('s_cmp_lg_u32 s3, 0\ns_cbranch_scc1 L_c_mid')
    a(f'''s_and_b32 s72, s2, 31
s_lshl_b32 s72, s72, 8
s_lshr_b32 s73, s2, 5
s_lshl_b32 s73, s73, 5
s_add_u32 s73, s73, s72
s_add_u32 s73, s73, {WS_ML}
v_and_b32 v5, 8, v1
v_lshlrev_b32 v3, 1, v5
v_mov_b32 v10, s32
v_mov_b32 v11, s33
v_and_b32 v12, 15, v1
v_lshlrev_b32 v12, 2, v12''')
    lds_spin(L_CNTL, 8, 0, 2, sleep=4)
    a(f'''ds_read_b32 v8, v12 offset:{L_MW}
ds_read_b32 v9, v12 offset:{L_LW}
s_waitcnt lgkmcnt(0)
v_max_f32_dpp v8, v8, v8 quad_perm:[1,0,3,2] {DPP}
v_add_f32_dpp v9, v9, v9 quad_perm:[1,0,3,2] {DPP}
v_max_f32_dpp v8, v8, v8 quad_perm:[2,3,0,1] {DPP}
v_add_f32_dpp v9, v9, v9 quad_perm:[2,3,0,1] {DPP}
v_max_f32_dpp v8, v8, v8 row_half_mirror {DPP}
v_add_f32_dpp v9, v9, v9 row_half_mirror {DPP}
s_mov_b64 exec, 0x101
buffer_store_dwordx4 v[8:11], v3, s[12:15], s73 offen sc1
s_mov_b64 exec, -1
s_waitcnt vmcnt(0)''')
    stamp('c_ml')
    a.label('L_c_mid')
    a('''s_cmp_eq_u32 s69, 0
s_cbranch_scc1 L_t_none
s_cmp_eq_u32 s69, 2
s_cbranch_scc1 L_t_o''')
    XW = 3
    srd(a, 16, PW1, SZ['w1'])
    def w1_issue():
        a(f'''s_mov_b32 s70, 9216
v_lshrrev_b32 v2, 2, v1
v_and_b32 v8, 3, v1
v_lshlrev_b32 v8, 4, v8
v_mul_u32_u24 v3, 9216, v2
v_lshl_add_u32 v4, v3, 3, v8
v_lshl_add_u32 v5, v3, 2, v8
s_lshl_b32 s72, s101, 6
s_mul_i32 s73, s3, {128*9216}
s_add_u32 s73, s73, s72''')
        narrow_issue(16, XW)
    a('s_bitcmp0_b32 s100, 31\ns_cbranch_scc1 L_f_w1e')
    lds_spin(L_CNTK, 8, 0, 2, sleep=8)
    w1_issue()
    a.label('L_f_w1e')
    XW = 3
    PM, PE = 144, 160
    B1R, GBR, B2R = 13, 14, 15
    srd(a, 28, PX, SZ['x']); srd(a, 20, PB1, SZ['b1']); srd(a, 24, PB2, SZ['b2'])
    G = W2
    a(f"""s_cmp_ge_u32 s101, 72
s_cselect_b32 s76, 1, 0
s_mul_i32 s72, s76, 72
s_sub_u32 s77, s101, s72
v_and_b32 v3, 31, v1
v_lshlrev_b32 v4, 4, v3
v_lshlrev_b32 v5, 3, v3
v_lshrrev_b32 v6, 5, v1
v_mul_u32_u24 v6, 1152, v6
v_lshl_add_u32 v7, v3, 3, v6
v_lshl_add_u32 v6, v3, 2, v6
s_lshl_b32 s71, s3, 8
v_lshrrev_b32 v2, 1, v1
v_lshlrev_b32 v2, 1, v2
v_and_b32 v3, 7, v1
v_lshlrev_b32 v9, 1, v3
v_lshlrev_b32 v8, 2, v3
s_lshl_b32 s70, s77, 5
s_add_u32 s70, s70, {WS_MOD2 + 1728*4}
s_lshl_b32 s72, s3, 9
s_add_u32 s72, s72, {WS_MOD2}
s_add_u32 s73, s72, 4608
s_mov_b32 s74, {WS_MOD2 + 2048}
s_mov_b32 s75, {WS_MOD2 + 2048 + 4608}
s_lshl_b32 s4, s101, 6
s_lshl_b32 s5, s77, 4""")
    lds_spin(L_ARR, 1, 0, 3, sleep=4)
    a(f"""buffer_load_dwordx4 {vr(G,4)}, v4, s[12:15], s72 offen sc1
buffer_load_dwordx4 {vr(G+4,4)}, v4, s[12:15], s72 offen offset:2304 sc1
buffer_load_dwordx4 {vr(G+8,4)}, v4, s[12:15], s73 offen sc1
buffer_load_dwordx2 {vr(G+12,2)}, v5, s[12:15], s74 offen sc1
buffer_load_dwordx2 {vr(G+14,2)}, v5, s[12:15], s74 offen offset:2304 sc1
buffer_load_dwordx2 {vr(G+16,2)}, v5, s[12:15], s75 offen sc1
buffer_load_dword v{GBR}, v8, s[12:15], s70 offen sc1
buffer_load_dwordx2 {vr(G+18,2)}, v7, s[28:31], s71 offen
buffer_load_dword v{G+20}, v6, s[28:31], 0 offen offset:1024
buffer_load_ushort v{B1R}, v2, s[20:23], s4 offen
buffer_load_ushort v{B2R}, v9, s[24:27], s5 offen
v_lshrrev_b32 v2, 5, v1
v_lshlrev_b32 v2, 4, v2
v_sub_u32 v2, 16, v2
s_waitcnt vmcnt(0)""")
    gav = [G + i for i in range(4)] + [G + 12, G + 13]
    sbv = [G + 4 + i for i in range(4)] + [G + 14, G + 15]
    cbv = [G + 8 + i for i in range(4)] + [G + 16, G + 17]
    PXr = [PM + i for i in range(4)] + [PE, PE + 1]
    PGr = [PM + 4 + i for i in range(4)] + [PE + 2, PE + 3]
    PCr = [PM + 8 + i for i in range(4)] + [PE + 4, PE + 5]
    PSr = [PM + 12 + i for i in range(4)] + [PE + 6, PE + 7]
    for src, dst in zip(gav + sbv + cbv, PGr + PSr + PCr):
        a(f'v_lshlrev_b32 v{src}, v2, v{src}\nv_and_b32 v{dst}, 0xffff0000, v{src}')
    for r in PCr: a(f'v_add_f32 v{r}, 1.0, v{r}')
    rnd(PCr, [3, 4, 5])
    unpack(G + 18, PM); unpack(G + 19, PM + 2); unpack(G + 20, PE)
    a(f"""s_lshl_b32 s72, s76, 4
s_sub_u32 s72, 16, s72
v_lshlrev_b32 v{GBR}, s72, v{GBR}
v_and_b32 v{GBR}, 0xffff0000, v{GBR}
v_lshlrev_b32 v{B1R}, 16, v{B1R}
v_lshlrev_b32 v{B2R}, 16, v{B2R}""")
    srd(a, 24, PW2, SZ['w2'])
    a('s_bitcmp1_b32 s100, 31\ns_cbranch_scc1 L_f_w1d')
    lds_spin(L_PUB, 1, 0, 7, sleep=1)
    w1_issue()
    a.label('L_f_w1d')
    a(f'''v_lshrrev_b32 v6, 4, v1
v_mul_u32_u24 v6, 1152, v6
v_and_b32 v3, 15, v1
v_lshl_add_u32 v6, v3, 4, v6
s_mul_i32 s74, s101, {32*1152}
s_lshl_b32 s75, s3, 8
s_add_u32 s75, s75, s74''')
    if not cfg.w2_early: lds_spin(L_PUB, 1, 0, 7, sleep=1)
    for jj in range(8):
        a(f'buffer_load_dwordx4 {vr(W2+4*jj,4)}, v6, s[24:27], s75 offen{NT}')
        if jj < 7: a('s_add_u32 s75, s75, 4608')
    a(f'''s_cmp_lg_u32 s3, 2
s_cbranch_scc1 L_f_nw2x
s_add_u32 s75, s74, 1024
s_mov_b32 exec_lo, 0x00ff00ff
s_mov_b32 exec_hi, 0x00ff00ff''')
    for jj in range(8):
        a(f'buffer_load_dwordx4 {vr(W2X+4*jj,4)}, v6, s[24:27], s75 offen{NT}')
        if jj < 7: a('s_add_u32 s75, s75, 4608')
    a('s_mov_b64 exec, -1')
    a.label('L_f_nw2x')
    a(f'''v_lshrrev_b32 v2, 5, v1
v_lshlrev_b32 v7, 5, v2
v_mul_u32_u24 v2, 2304, v2
v_and_b32 v3, 31, v1
v_lshl_add_u32 v4, v3, 4, v2
v_lshl_add_u32 v5, v3, 3, v2
s_lshl_b32 s72, s3, 9
v_add_u32 v4, s72, v4
v_add_u32 v5, 2048, v5
s_lshl_b32 s72, s3, 3
v_add_u32 v6, s72, v7
s_lshl_b32 s72, s3, 10
s_add_u32 s72, s72, {L_AV}
v_lshlrev_b32 v8, 3, v1
v_add_u32 v8, s72, v8
v_lshrrev_b32 v2, 2, v1
v_and_b32 v3, 1, v1
v_lshlrev_b32 v9, 8, v3
v_lshl_add_u32 v9, v2, 4, v9
v_add_u32 v9, s72, v9
v_lshlrev_b32 v11, 2, v1
s_lshl_b32 s72, s3, 8
s_add_u32 s72, s72, {L_TD}
v_and_b32 v12, 1, v1
v_lshlrev_b32 v12, 7, v12
v_bfe_u32 v2, v1, 1, 2
v_lshl_add_u32 v12, v2, 5, v12
v_lshrrev_b32 v2, 3, v1
v_lshl_add_u32 v12, v2, 2, v12
v_add_u32 v12, s72, v12''')
    narrow_addr(10)
    for r in range(8): a(f's_mov_b32 s{4+r}, {WS_X1P + 4608*r}')
    SO = lambda r: f's{4+r}'
    srd(a, 28, POUT, SZ['out'])
    a('s_waitcnt vmcnt(8)')
    transpose8(RAW, TR)
    a(f's_cmp_lg_u32 s3, {XW}\ns_cbranch_scc1 L_f_nx')
    transpose4(RAW2, TR2)
    a.label('L_f_nx')
    a('s_waitcnt vmcnt(0)')
    stamp('t_w')
    if cfg.w2_early: lds_spin(L_PUB, 1, 0, 2, sleep=2)
    a(f's_cmp_eq_u32 s3, {XW}\ns_cbranch_scc1 L_f_x')
    def f_phase1(x):
        n = 6 if x else 4
        X = [RAW + i for i in range(4)] + ([RAW2, RAW2 + 1] if x else [])
        prs = [X[i] for i in range(0, n, 2)]
        T3 = [RAW + 8, RAW + 9, RAW + 10]
        grp = [[(RAW + 4 * r, 4, 4, SO(r), 0) for r in range(8)]]
        if x: grp.append([(RAW2 + 2 * r, 2, 5, SO(r), 0) for r in range(8)])
        sum_poll(grp, 2)
        stamp('t_poll')
        rnd(X, T3)
        for i, p in enumerate(prs): a(f'v_pk_mul_f32 {vr(p,2)}, {vr(p,2)}, {vr(PGr[2*i],2)}')
        rnd(X, T3)
        for i, p in enumerate(prs): a(f'v_pk_add_f32 {vr(p,2)}, {vr(p,2)}, {vr(PXr[2*i],2)}')
        rnd(X, T3)
        D = [RAW + 12 + i for i in range(6)]
        a(f'''v_readlane_b32 s72, v{RAW}, 0
v_readlane_b32 s73, v{RAW}, 32
ds_write_b128 v4, {vr(RAW,4)} offset:{L_X1}''')
        if x: a(f'ds_write_b64 v5, {vr(RAW2,2)} offset:{L_X1}')
        K = RAW + 18
        a(f'''v_mov_b32 v{K}, s72
v_mov_b32 v{K+1}, s73
s_mov_b32 s66, 0
s_mov_b32 s67, -1
v_cndmask_b32 v{K}, v{K}, v{K+1}, s[66:67]''')
        for i in range(n): a(f'v_sub_f32 v{D[i]}, v{X[i]}, v{K}')
        S1, S2 = RAW + 20, RAW + 22
        a(f'v_pk_add_f32 {vr(S1,2)}, {vr(D[0],2)}, {vr(D[2],2)}')
        a(f'v_pk_mul_f32 {vr(S2,2)}, {vr(D[0],2)}, {vr(D[0],2)}')
        a(f'v_pk_fma_f32 {vr(S2,2)}, {vr(D[2],2)}, {vr(D[2],2)}, {vr(S2,2)}')
        if x:
            a(f'v_pk_add_f32 {vr(S1,2)}, {vr(S1,2)}, {vr(D[4],2)}')
            a(f'v_pk_fma_f32 {vr(S2,2)}, {vr(D[4],2)}, {vr(D[4],2)}, {vr(S2,2)}')
        a(f'v_add_f32 v{S1}, v{S1}, v{S1+1}\nv_add_f32 v{S2}, v{S2}, v{S2+1}')
        half_reduce([S1, S2], [S1 + 1, S2 + 1])
        a(f'''s_mov_b32 s82, {'0x3baaaaab' if x else '0x3c000000'}
v_mul_f32 v{S1+1}, s82, v{S1}
v_add_f32 v2, v{K}, v{S1+1}
v_fma_f32 v3, -v{S1+1}, v{S1}, v{S2}
s_mov_b32 exec_lo, 1
s_mov_b32 exec_hi, 1
ds_write_b64 v6, v[2:3] offset:{L_STAT}
s_mov_b64 exec, -1
s_waitcnt lgkmcnt(0)
s_barrier''')
        Q = RAW + 24
        a(f'''ds_read_b128 {vr(Q,4)}, v7 offset:{L_STAT}
ds_read_b128 {vr(Q+4,4)}, v7 offset:{L_STAT+16}
s_mov_b32 s72, 0x40400000
s_mov_b32 s73, 0x3de38e39
s_mov_b32 s74, 0x3fc00000
s_mov_b32 s75, 0x43000000
s_mov_b32 s82, 0x3ae38e39
s_waitcnt lgkmcnt(0)''')
        stamp('f_bar1')
        a(f'''v_add_f32 v2, v{Q}, v{Q+2}
v_add_f32 v{Q+1}, v{Q+1}, v{Q+3}
v_add_f32 v2, v2, v{Q+4}
v_add_f32 v{Q+5}, v{Q+5}, v{Q+7}
v_add_f32 v2, v2, v2
v_add_f32 v{Q+1}, v{Q+1}, v{Q+5}
v_fmac_f32 v2, s72, v{Q+6}
v_mul_f32 v2, s73, v2
v_sub_f32 v{Q}, v{Q}, v2
v_sub_f32 v{Q+2}, v{Q+2}, v2
v_sub_f32 v{Q+4}, v{Q+4}, v2
v_sub_f32 v{Q+6}, v{Q+6}, v2
v_mul_f32 v3, v{Q}, v{Q}
v_mul_f32 v{Q+6}, v{Q+6}, v{Q+6}
v_fmac_f32 v3, v{Q+2}, v{Q+2}
v_fmac_f32 v3, v{Q+4}, v{Q+4}
v_fmac_f32 v3, s74, v{Q+6}
v_fmac_f32 v{Q+1}, s75, v3
v_mul_f32 v3, s82, v{Q+1}''')
        ln_finish(2, 3, T3[0])
        for r in X: a(f'v_sub_f32 v{r}, v{r}, v2')
        rnd(X, T3)
        for r in X: a(f'v_mul_f32 v{r}, v{r}, v3')
        rnd(X, T3)
        for i, p in enumerate(prs): a(f'v_pk_mul_f32 {vr(p,2)}, {vr(p,2)}, {vr(PCr[2*i],2)}')
        rnd(X, T3)
        for i, p in enumerate(prs): a(f'v_pk_add_f32 {vr(p,2)}, {vr(p,2)}, {vr(PSr[2*i],2)}')
        a(f'''v_cvt_pk_bf16_f32 v2, v{X[0]}, v{X[1]}
v_cvt_pk_bf16_f32 v3, v{X[2]}, v{X[3]}
ds_write_b64 v8, v[2:3]''')
        if x:
            a(f'''v_cvt_pk_bf16_f32 v{K}, v{X[4]}, v{X[5]}
v_add_u32 v{K+1}, {L_AV + 1024*XW + 512}, v11
ds_write_b32 v{K+1}, v{K}
v_subrev_u32 v{K+1}, {L_AV + 1024*XW}, v9
v_lshrrev_b32 v{K+1}, 1, v{K+1}''')
        a(f's_waitcnt lgkmcnt(0)\nds_read_b128 {vr(A,4)}, v9')
        if x: a(f'ds_read_b64 {vr(A2,2)}, v{K+1} offset:{L_AV + 1024*XW + 512}')
        a('s_waitcnt lgkmcnt(0)')
        for e in range(8): a(f'v_mfma_f32_16x16x32_bf16 {vr(RAW+4*e,4)}, {vr(A,4)}, {vr(TR+4*e,4)}, 0')
        if x:
            for e in range(8): a(f'v_mfma_f32_16x16x16_bf16 {vr(RAW+4*e,4)}, {vr(A2,2)}, {vr(TR2+2*e,2)}, {vr(RAW+4*e,4)}')
    f_phase1(False)
    a('s_branch L_f_j')
    a.label('L_f_x')
    f_phase1(True)
    a.label('L_f_j')
    narrow_write(10)
    MR2, AT2, TV, D2 = 150, 154, RAW, RAW + 8
    a(f'''s_lshl_b32 s72, s3, 8
s_add_u32 s72, s72, {L_TD}
v_bfe_u32 v4, v1, 3, 1
v_lshlrev_b32 v4, 7, v4
v_lshrrev_b32 v5, 4, v1
v_lshl_add_u32 v4, v5, 5, v4
v_add_u32 v4, s72, v4
v_and_b32 v5, 1, v1
v_lshlrev_b32 v5, 4, v5
v_mov_b32 v6, 0xffff
v_lshlrev_b32 v5, v5, v6
v_bfe_u32 v6, v1, 1, 2''')
    for r in range(4): a(f'v_cmp_eq_u32 vcc, {r}, v6\nv_cndmask_b32 v{MR2+r}, 0, v5, vcc')
    a(f'''v_lshrrev_b32 v7, 5, v1
v_mul_u32_u24 v7, 2304, v7
v_and_b32 v8, 15, v1
v_lshl_add_u32 v7, v8, 5, v7
v_bfe_u32 v8, v1, 4, 1
v_lshl_add_u32 v7, v8, 4, v7
s_mul_i32 s72, s101, 4608
s_add_u32 s72, s72, {WS_YP}
s_lshl_b32 s73, s3, 9
s_add_u32 s73, s73, s72
s_waitcnt lgkmcnt(0)
s_barrier''')
    stamp('f_bar2')
    narrow_sum(3, 11)
    rnd([3], 2)
    a(f'v_add_f32 v3, v3, v{B1R}')
    rnd([3], 2)
    a(f'''v_max_f32 v3, 0, v3
v_mul_f32 v3, v3, v3
v_cvt_pk_bf16_f32 v3, v3, v3
ds_write_b32 v12, v3
s_waitcnt lgkmcnt(0)
ds_read_b128 {vr(TV,4)}, v4
ds_read_b128 {vr(TV+4,4)}, v4 offset:16
s_cmp_eq_u32 s3, 2
s_cbranch_scc1 L_f2_x''')
    def f2(extra):
        for jj in range(8):
            at = AT2 + 4 * (jj % 2)
            if jj == 0: a('s_waitcnt lgkmcnt(1)')
            if jj == 4: a('s_waitcnt lgkmcnt(0)')
            if jj == 0:
                for r in range(4): a(f'v_and_b32 v{at+r}, v{TV}, v{MR2+r}')
            if jj + 1 < 8:
                if jj + 1 == 4: a('s_waitcnt lgkmcnt(0)')
                for r in range(4): a(f'v_and_b32 v{AT2+4*((jj+1)%2)+r}, v{TV+jj+1}, v{MR2+r}')
            a(f'v_mfma_f32_16x16x32_bf16 {vr(D2,4)}, {vr(at,4)}, {vr(W2+4*jj,4)}, ' + ('0' if jj == 0 else vr(D2, 4)))
            if extra: a(f'v_mfma_f32_16x16x32_bf16 {vr(D2+4,4)}, {vr(at,4)}, {vr(W2X+4*jj,4)}, ' + ('0' if jj == 0 else vr(D2 + 4, 4)))
        a(f'''v_lshrrev_b32 v2, 1, v1
v_mul_u32_u24 v2, 4608, v2
v_and_b32 v3, 1, v1
v_lshl_add_u32 v2, v3, 4, v2
s_mul_i32 s74, s76, 2304
s_lshl_b32 s75, s77, 5
s_add_u32 s74, s74, s75''')
        a(f'buffer_store_dwordx4 {vr(D2,4)}, v7, s[12:15], s73 offen sc1')
        if extra:
            a(f'''s_mov_b32 exec_lo, 0x00ff00ff
s_mov_b32 exec_hi, 0x00ff00ff
buffer_store_dwordx4 {vr(D2+4,4)}, v7, s[12:15], s72 offen offset:2048 sc1
s_mov_b64 exec, -1''')
    f2(False)
    a('s_branch L_f2_d')
    a.label('L_f2_x')
    f2(True)
    a.label('L_f2_d')
    stamp('t_pub')
    a(f'''s_add_u32 s72, s74, {WS_YP}
s_mul_i32 s73, s3, {32*4608}
s_add_u32 s73, s73, s72
v_lshrrev_b32 v8, 4, v1
v_lshlrev_b32 v8, 5, v8
v_lshl_add_u32 v8, v3, 4, v8
s_lshl_b32 s75, s3, 7
v_add_u32 v8, s75, v8
v_and_b32 v9, 7, v1
v_lshlrev_b32 v10, 2, v9
v_add_u32 v11, s74, v10
v_lshlrev_b32 v9, 1, v9
s_lshr_b32 s74, s74, 1
ds_read_b32 v12, v11 offset:{L_X1}
s_cmp_eq_u32 s3, 1
s_cbranch_scc1 L_fin_x''')
    FA = RAW + 16
    def fin_poll(x):
        L = a.newlabel('FP'); D = a.newlabel('FPD')
        a('s_mov_b32 s80, 0')
        a.label(L)
        a(f'buffer_load_dwordx4 {vr(FA,4)}, v2, s[12:15], s73 offen sc1')
        if x:
            a(f'''s_mov_b32 exec_hi, 0
buffer_load_dwordx4 {vr(FA+4,4)}, v2, s[12:15], s72 offen sc1
s_waitcnt vmcnt(0)
v_pk_add_f32 {vr(FA,2)}, {vr(FA,2)}, {vr(FA+4,2)}
v_pk_add_f32 {vr(FA+2,2)}, {vr(FA+2,2)}, {vr(FA+6,2)}
s_mov_b64 exec, -1''')
        else: a('s_waitcnt vmcnt(0)')
        a(f'''v_cmp_u_f32 s[66:67], v{FA}, v{FA+1}
v_cmp_u_f32 vcc, v{FA+2}, v{FA+3}
s_or_b64 s[66:67], s[66:67], vcc
s_cbranch_scc0 {D}
s_sleep {cfg.s5sleep}
s_add_u32 s80, s80, 1
s_cmp_gt_u32 s80, {SPIN_LIMIT}
s_cbranch_scc0 {L}''')
        a.label(D)
    fin_poll(False)
    a('s_branch L_fin_d')
    a.label('L_fin_x')
    a(f's_add_u32 s72, s72, {128*4608}')
    fin_poll(True)
    a.label('L_fin_d')
    stamp('f_s5')
    for sh in (2, 4, 8):
        for r in range(4): a(f'v_add_f32_dpp v{FA+r}, v{FA+r}, v{FA+r} row_ror:{sh} {DPP}')
    a(f'''s_mov_b32 exec_lo, 0x00030003
s_mov_b32 exec_hi, 0x00030003
ds_write_b128 v8, {vr(FA,4)} offset:{L_FIN}
s_mov_b64 exec, -1''')
    lds_last(L_CNTF, 4, 0, 2, 'L_fin_end')
    for p in range(16): a(f'ds_read_b32 v{TR+p}, v10 offset:{L_FIN+32*p}')
    for p in range(0, 16, 4):
        a(f's_waitcnt lgkmcnt({12-p})')
        a(f'v_pk_add_f32 {vr(TR+p,2)}, {vr(TR+p,2)}, {vr(TR+p+2,2)}')
    a(f'''v_pk_add_f32 {vr(TR,2)}, {vr(TR,2)}, {vr(TR+4,2)}
v_pk_add_f32 {vr(TR+8,2)}, {vr(TR+8,2)}, {vr(TR+12,2)}
v_pk_add_f32 {vr(TR,2)}, {vr(TR,2)}, {vr(TR+8,2)}
v_add_f32 v{TR}, v{TR}, v{TR+1}''')
    rnd([TR], 2)
    a(f'v_add_f32 v{TR}, v{TR}, v{B2R}')
    rnd([TR], 2)
    a(f'v_mul_f32 v{TR}, v{TR}, v{GBR}')
    rnd([TR], 2)
    a(f'''v_add_f32 v{TR}, v{TR}, v12
v_cvt_pk_bf16_f32 v6, v{TR}, v{TR}
s_mov_b64 exec, 0xff
buffer_store_short v6, v9, s[28:31], s74 offen
s_mov_b64 exec, -1
s_cmp_lg_u32 s101, 0
s_cbranch_scc1 L_fin_end
v_mov_b32 v8, s32
v_mov_b32 v9, s33
s_mov_b32 s70, {WS_EP}
s_mov_b64 exec, 1
buffer_store_dwordx2 v[8:9], v0, s[12:15], s70 offen sc1
s_mov_b64 exec, -1''')
    a.label('L_fin_end')
    chain_end()

    a.label('L_t_o')
    RA, RB, TA, TB = 16, 80, 48, 112
    srd(a, 20, PWO, SZ['wo'])
    a(f'''s_mov_b32 s71, s101
s_mul_i32 s76, s71, 57
s_lshr_b32 s76, s76, 9
s_mul_i32 s73, s76, 9
s_sub_u32 s77, s71, s73
v_lshrrev_b32 v2, 3, v1
v_mul_u32_u24 v2, {8*1152}, v2
v_and_b32 v3, 7, v1
v_lshl_add_u32 v2, v3, 4, v2
s_lshl_b32 s72, s76, 9
s_lshl_b32 s73, s3, 7
s_add_u32 s72, s72, s73
s_mul_i32 s72, s72, 1152
s_lshl_b32 s73, s77, 7
s_add_u32 s72, s72, s73''')
    if cfg.touch:
        a(f'''s_mov_b64 exec, 1
buffer_load_dword v{RA}, v0, s[20:23], s72 offen
s_mov_b64 exec, -1''')
    lds_spin({'A': L_CNTA, 'V': L_CNTV, 'K': L_CNTK}[cfg.wo_at], 9 if cfg.wo_at == 'A' else 8, 0, 3, sleep=2)
    for blk, R in ((0, RA), (1, RB)):
        for j in range(8):
            o = (64 * blk + j) * 1152
            a(f's_add_u32 s73, s72, {o & ~0xfff}')
            a(f'buffer_load_dwordx4 {vr(R+4*j,4)}, v2, s[20:23], s73 offen offset:{o & 0xfff}{NT}')
    a(f'''v_lshrrev_b32 v4, 5, v1
v_lshlrev_b32 v4, 17, v4
v_and_b32 v3, 31, v1
v_lshl_add_u32 v4, v3, 4, v4
s_lshl_b32 s72, s76, 1
s_lshr_b32 s73, s3, 1
s_add_u32 s72, s72, s73
s_lshl_b32 s72, s72, 13
s_and_b32 s73, s3, 1
s_lshl_b32 s73, s73, 9
s_add_u32 s72, s72, s73
s_add_u32 s72, s72, {WS_OP}
s_add_u32 s73, s72, 4096
s_lshl_b32 s74, s3, 10
s_add_u32 s75, s74, {L_AV}
v_lshlrev_b32 v8, 3, v1
v_add_u32 v5, s75, v8
v_lshrrev_b32 v6, 4, v1
v_bfe_u32 v3, v1, 2, 1
v_lshl_add_u32 v6, v6, 1, v3
v_and_b32 v3, 1, v1
v_lshlrev_b32 v3, 8, v3
v_lshl_add_u32 v6, v6, 4, v3
v_add_u32 v6, s75, v6
v_and_b32 v7, 7, v1
v_lshlrev_b32 v7, 6, v7
v_lshrrev_b32 v3, 4, v1
v_lshl_add_u32 v7, v3, 9, v7
v_add_u32 v7, s74, v7
v_lshlrev_b32 v9, 2, v1
s_mul_i32 s74, s76, 4608
s_lshl_b32 s75, s77, 8
s_add_u32 s74, s74, s75
s_add_u32 s74, s74, {WS_X1P}''')
    lds_spin(L_ARR, 1, 0, 3)
    a('s_waitcnt vmcnt(8)')
    transpose8(RA, TA)
    a('s_waitcnt vmcnt(0)')
    stamp('t_w')
    transpose8(RB, TB)
    FS = 152
    a(f'''v_lshrrev_b32 v2, 5, v1
v_lshlrev_b32 v2, 12, v2
v_and_b32 v3, 7, v1
v_lshl_add_u32 v2, v3, 5, v2
s_lshl_b32 s70, s76, 1
s_lshr_b32 s71, s3, 1
s_add_u32 s70, s70, s71
s_lshl_b32 s70, s70, 8
s_and_b32 s71, s3, 1
s_lshl_b32 s71, s71, 4
s_add_u32 s70, s70, s71
s_add_u32 s70, s70, {WS_ML}
s_mov_b32 s82, 0x3fb8aa3b''')
    tpoll([(RA, 2, 's70', 0)], sleep=8)
    a(f'''v_max_f32_dpp v10, v{RA}, v{RA} quad_perm:[1,0,3,2] {DPP}
v_max_f32_dpp v10, v10, v10 quad_perm:[2,3,0,1] {DPP}
v_max_f32_dpp v10, v10, v10 row_half_mirror {DPP}
v_sub_f32 v10, v{RA}, v10
v_mul_f32 v10, s82, v10
v_exp_f32 v10, v10
v_mul_f32 v11, v10, v{RA+1}
v_add_f32_dpp v11, v11, v11 quad_perm:[1,0,3,2] {DPP}
v_add_f32_dpp v11, v11, v11 quad_perm:[2,3,0,1] {DPP}
v_add_f32_dpp v11, v11, v11 row_half_mirror {DPP}
v_rcp_f32 v11, v11
v_mul_f32 v10, v10, v11''')
    for sp in range(8): a(f'v_mov_b32_dpp v{FS+sp}, v10 row_newbcast:{sp} {DPP}')
    stamp('f_bar1')
    lds_spin(L_PUB, 1, 0, 3, sleep=2)
    L = a.newlabel('OP'); D = a.newlabel('OPD')
    a('s_mov_b32 s80, 0')
    a.label(L)
    for sp in range(8):
        a(f'buffer_load_dwordx4 {vr(RA+4*sp,4)}, v4, s[12:15], {"s72" if sp < 4 else "s73"} offen offset:{(sp%4)*1024} sc1')
    for sp in range(8):
        a(f's_waitcnt vmcnt({7-sp})')
        sel = 'op_sel_hi:[1,0,1]' if sp % 2 == 0 else 'op_sel:[0,1,0] op_sel_hi:[1,1,1]'
        fp = vr(FS + sp - sp % 2, 2)
        acc = RA + 4 * (sp % 2)
        for h in (0, 2):
            if sp < 2: a(f'v_pk_mul_f32 {vr(RA+4*sp+h,2)}, {vr(RA+4*sp+h,2)}, {fp} ' + sel.replace(',1]', ']', 1).replace(',0]', ']') if False else f'v_pk_mul_f32 {vr(RA+4*sp+h,2)}, {vr(RA+4*sp+h,2)}, {fp} ' + ('op_sel_hi:[1,0]' if sp % 2 == 0 else 'op_sel:[0,1] op_sel_hi:[1,1]'))
            else: a(f'v_pk_fma_f32 {vr(acc+h,2)}, {vr(RA+4*sp+h,2)}, {fp}, {vr(acc+h,2)} {sel}')
    a(f'''v_pk_add_f32 {vr(RA,2)}, {vr(RA,2)}, {vr(RA+4,2)}
v_pk_add_f32 {vr(RA+2,2)}, {vr(RA+2,2)}, {vr(RA+6,2)}
v_cmp_u_f32 s[66:67], v{RA}, v{RA+1}
v_cmp_u_f32 vcc, v{RA+2}, v{RA+3}
s_or_b64 s[66:67], s[66:67], vcc
s_cbranch_scc0 {D}
s_sleep {cfg.s3sleep}
s_add_u32 s80, s80, 1
s_cmp_gt_u32 s80, {SPIN_LIMIT}
s_cbranch_scc0 {L}''')
    a.label(D)
    stamp('t_poll')
    a(f'''v_cvt_pk_bf16_f32 v2, v{RA}, v{RA+1}
v_cvt_pk_bf16_f32 v3, v{RA+2}, v{RA+3}
ds_write_b64 v5, v[2:3]
s_waitcnt lgkmcnt(0)
ds_read_b128 {vr(A,4)}, v6
ds_read_b128 {vr(A+4,4)}, v6 offset:128
s_waitcnt lgkmcnt(1)''')
    for e in range(8): a(f'v_mfma_f32_16x16x32_bf16 {vr(RB+4*e,4)}, {vr(A,4)}, {vr(TA+4*e,4)}, 0')
    a('s_waitcnt lgkmcnt(0)')
    for e in range(8): a(f'v_mfma_f32_16x16x32_bf16 {vr(RB+4*e,4)}, {vr(A+4,4)}, {vr(TB+4*e,4)}, {vr(RB+4*e,4)}')
    a('s_mov_b32 exec_lo, 0xff0000ff\ns_mov_b32 exec_hi, 0')
    for e in range(8): a(f'ds_write_b64 v7, {vr(RB+4*e,2)} offset:{L_RED+8*e}')
    a('s_mov_b64 exec, -1')
    lds_last(L_CNTO, 4, 0, 2, 'L_o_end')
    for p in range(8): a(f'ds_read_b64 {vr(TA+2*p,2)}, v8 offset:{L_RED+512*p}')
    for p in range(0, 8, 2):
        a(f's_waitcnt lgkmcnt({6-p})')
        a(f'v_pk_add_f32 {vr(TA+2*p,2)}, {vr(TA+2*p,2)}, {vr(TA+2*p+2,2)}')
    a(f'''v_pk_add_f32 {vr(TA,2)}, {vr(TA,2)}, {vr(TA+4,2)}
v_pk_add_f32 {vr(TA+8,2)}, {vr(TA+8,2)}, {vr(TA+12,2)}
v_pk_add_f32 {vr(TA,2)}, {vr(TA,2)}, {vr(TA+8,2)}
buffer_store_dword v{TA}, v9, s[12:15], s74 offen sc1
buffer_store_dword v{TA+1}, v9, s[12:15], s74 offen offset:2304 sc1''')
    stamp('t_pub')
    a.label('L_o_end')
    a.label('L_t_none')
    chain_end()

    a.label('L_stream')
    SL = lambda k: 26 + 4 * k
    NL = 16
    NOPT = NMAX - NCOM
    VD = lambda p: SL(p - NL)
    VR = lambda p: SL(19 + p % 12)
    MR, AT, OA = SL(31), SL(32), SL(34)
    OS = 16
    a(f"""s_setprio 1
s_sub_u32 s3, s3, 4
v_and_b32 v2, 3, v1
v_lshlrev_b32 v2, 4, v2
v_bfe_u32 v3, v1, 2, 2
v_lshl_add_u32 v2, v3, 8, v2
v_lshrrev_b32 v3, 4, v1
v_lshl_add_u32 v2, v3, 6, v2
v_lshlrev_b32 v3, 4, v1
v_and_b32 v18, 3, v1
v_lshlrev_b32 v18, 4, v18
v_bfe_u32 v17, v1, 2, 1
v_lshl_add_u32 v18, v17, 8, v18
v_lshrrev_b32 v17, 4, v1
v_lshl_add_u32 v18, v17, 6, v18
s_and_b32 s34, s2, 31
s_lshl_b32 s70, s34, 21
s_lshl_b32 s34, s34, 3
s_lshr_b32 s35, s2, 5
s_add_u32 s34, s34, s35
s_lshl_b32 s34, s34, 10
s_add_u32 s34, s34, {WS_OP}
s_lshl_b32 s35, s3, 14
s_add_u32 s35, s35, {L_V}
s_waitcnt lgkmcnt(0)
s_and_b32 s71, s100, 0xff
s_lshl_b32 s71, s71, 13
s_add_u32 s70, s70, s71
s_bfe_u32 s25, s100, 0x40008
s_lshl_b32 s71, s3, 10
s_add_u32 s70, s70, s71""")
    srd(a, 4, PK, SZ['k']); srd(a, 8, PV, SZ['v']); srd(a, 12, PWS, SZ['ws'])
    def off(p):
        if p >= NCOM: return f's{OS+p-NCOM}'
        a(f's_add_u32 s71, s70, {p*8192}')
        return 's71'
    def dep(d=None):
        d = cfg.depth if d is None else d
        if d: a(f's_waitcnt vmcnt({d-1})')
    def kload(p): a(f'buffer_load_dwordx4 {vr(SL(p),4)}, v2, s[4:7], {off(p)} offen{NT}')
    def vload(p): a(f'buffer_load_dwordx4 {vr(VD(p),4)}, v3, s[8:11], {off(p)} offen{NT}')
    def vdma(p):
        a(f's_add_u32 m0, s35, {p * 1024}')
        a(f'buffer_load_dwordx4 v3, s[8:11], {off(p)} offen{NT} lds')
    posm = [0x11111111, 0x22222222, 0x44444444, 0x88888888]
    def opt_setup():
        for o in range(NOPT):
            a(f"""s_add_u32 s{OS+o}, s70, {(NCOM+o)*8192}
s_cmp_gt_u32 s25, {o}
s_cselect_b32 s{OS+o}, s{OS+o}, 0x80000000
s_cselect_b32 s{40+2*o}, {posm[(NCOM+o)%4]}, 0
s_mov_b32 s{41+2*o}, s{40+2*o}""")
        for i, m in enumerate(posm): a(f's_mov_b32 s{58+2*i}, {m}\ns_mov_b32 s{59+2*i}, {m}')
        for r in (14, 15, 16): a(f'v_mov_b32 v{r}, 0xff800000')
    if cfg.crit_d:
        a('s_bitcmp1_b32 s100, 30\ns_cbranch_scc1 L_kslow')
    for p in range(NMAX):
        if p == 4: opt_setup()
        a.label(f'L_kf{p}')
        if p >= cfg.depth: dep()
        kload(p)
    a.label(f'L_kf{NMAX}')
    lds_inc(L_CNTK, 0, 17)
    stamp('s_issued')
    a('s_setprio 0')
    lds_spin(L_CNTK, 8, 0, 17, sleep=4)
    NG = NL // 4
    for g in range(NG):
        if g < cfg.pre_g:
            for p in range(4 * g, 4 + 4 * g): vdma(p)
            continue
        a(f"""ds_read_b32 v17, v0 offset:{L_QF}
s_waitcnt lgkmcnt(0)
v_readfirstlane_b32 s81, v17
s_mov_b32 s79, {g}
s_cmp_lg_u32 s81, 0
s_cbranch_scc1 L_qk_w{g}""")
        for p in range(4 * g, 4 + 4 * g): dep(); vdma(p)
    lds_spin(L_QF, 1, 0, 17)
    a(f's_mov_b32 s79, {NG}\ns_waitcnt vmcnt({NL})\ns_branch L_qk')
    for g in range(cfg.pre_g, NG):
        a.label(f'L_qk_w{g}')
        a(f's_waitcnt vmcnt({4 * g})')
        if g + 1 < NG: a('s_branch L_qk')
    a.label('L_qk')
    a(f's_setprio 1\nds_read_b128 v[4:7], v18 offset:{L_Q}\ns_waitcnt lgkmcnt(0)')
    stamp('s_q')
    def qk_post(p):
        D = 18 + 4 * (p % 2); i, c = p // 4, p % 4
        direct = c == 0 and i < NCOM // 4
        T = 8 + i if direct else 1
        a(f'v_mov_b32_dpp v{T}, v{D} quad_perm:[0,0,0,0] {DPP}')
        for t in (1, 2, 3): a(f'v_add_f32_dpp v{T}, v{D+t}, v{T} quad_perm:[{t},{t},{t},{t}] {DPP}')
        if not direct:
            m = f's[{58+2*c}:{59+2*c}]' if p < NCOM else f's[{40+2*(p-NCOM)}:{41+2*(p-NCOM)}]'
            a(f'v_cndmask_b32 v{8+i}, v{8+i}, v1, {m}')
    a('v_mov_b32 v0, v1')
    for p in range(NMAX):
        a(f'v_mfma_f32_16x16x32_bf16 {vr(18+4*(p%2),4)}, {vr(SL(p),4)}, v[4:7], 0')
        if p: qk_post(p - 1)
    qk_post(NMAX - 1)
    S = list(range(8, 17))
    if not cfg.noround: rnd(S, [18, 19, 20, 21, 22])
    a('s_mov_b32 s82, 0x3db504f3')
    for r in S: a(f'v_mul_f32 v{r}, s82, v{r}')
    if not cfg.noround: rnd(S, [18, 19, 20, 21, 22])
    a(f"""v_max3_f32 v18, v8, v9, v10
v_max3_f32 v19, v11, v12, v13
v_max3_f32 v20, v14, v15, v16
v_max3_f32 v18, v18, v19, v20
v_max_f32_dpp v18, v18, v18 quad_perm:[1,0,3,2] {DPP}
v_max_f32_dpp v18, v18, v18 quad_perm:[2,3,0,1] {DPP}
v_mov_b32 v19, v18
v_permlane16_swap_b32 v18, v19
v_max_f32 v18, v18, v19
v_mov_b32 v19, v18
v_permlane32_swap_b32 v18, v19
v_max_f32 v18, v18, v19
s_mov_b32 s83, 0x3fb8aa3b
v_lshlrev_b32 v24, 3, v0
s_lshl_b32 s81, s3, 2
v_add_u32 v24, s81, v24
v_mov_b32 v1, 0
s_mov_b64 exec, 0x11
ds_write_b32 v24, v18 offset:{L_MW}
s_mov_b64 exec, -1""")
    lds_inc(L_CNTA, 1, 17)
    stamp('s_qk')
    a(f"""v_and_b32 v18, 3, v0
v_bfe_u32 v19, v0, 3, 1
v_lshl_add_u32 v18, v19, 2, v18
v_and_b32 v19, 1, v18
v_lshlrev_b32 v19, 4, v19
v_mov_b32 v17, 0xffff
v_lshlrev_b32 v19, v19, v17
v_lshrrev_b32 v18, 1, v18""")
    for r in range(4):
        a(f'v_cmp_eq_u32 vcc, {r}, v18\nv_cndmask_b32 v{MR+r}, 0, v19, vcc')
    a(f"""v_bfe_u32 v18, v0, 2, 1
v_lshlrev_b32 v18, 5, v18
v_and_b32 v20, 15, v0
v_lshlrev_b32 v20, 5, v20
v_bfe_u32 v19, v0, 4, 1
v_lshl_add_u32 v20, v19, 9, v20
v_lshrrev_b32 v19, 5, v0
v_lshl_add_u32 v20, v19, 4, v20
s_lshl_b32 s81, s3, 10
v_add_u32 v20, s81, v20
v_add_u32 v21, s35, v3""")
    lds_spin(L_CNTA, 9, 1, 17)
    a(f"""ds_read_b128 {vr(AT,4)}, v18 offset:{L_MW}
ds_read_b128 {vr(AT+4,4)}, v18 offset:{L_MW+16}
s_waitcnt lgkmcnt(0)
v_max3_f32 v18, v{AT}, v{AT+1}, v{AT+2}
v_max3_f32 v19, v{AT+3}, v{AT+4}, v{AT+5}
v_max3_f32 v18, v18, v{AT+6}, v{AT+7}
v_max_f32 v18, v18, v19""")
    stamp('s_ml')
    for r in S: a(f'v_sub_f32 v{r}, v{r}, v18')
    for r in S: a(f'v_mul_f32 v{r}, s83, v{r}')
    for r in S: a(f'v_exp_f32 v{r}, v{r}')
    a(f"""v_pk_add_f32 v[18:19], v[8:9], v[10:11]
v_pk_add_f32 v[22:23], v[12:13], v[14:15]
v_pk_add_f32 v[18:19], v[18:19], v[22:23]
v_add_f32 v19, v18, v19
v_add_f32 v19, v19, v16""")
    for r in S: a(f'v_cvt_pk_bf16_f32 v{r}, v{r}, v{r}')
    a(f"""v_add_f32_dpp v19, v19, v19 quad_perm:[1,0,3,2] {DPP}
v_add_f32_dpp v19, v19, v19 quad_perm:[2,3,0,1] {DPP}
v_mov_b32 v18, v19
v_permlane16_swap_b32 v19, v18
v_add_f32 v19, v19, v18
v_mov_b32 v18, v19
v_permlane32_swap_b32 v19, v18
v_add_f32 v19, v19, v18
s_mov_b64 exec, 0x11
ds_write_b32 v24, v19 offset:{L_LW}
s_mov_b64 exec, -1""")
    lds_inc(L_CNTL, 1, 17)
    a('s_setprio 0')
    for g in range(cfg.pre_g, NG):
        a(f's_cmp_gt_u32 s79, {g}\ns_cbranch_scc1 L_dma{g}')
        for p in range(4 * g, 4 + 4 * g): dep(cfg.vdepth); vdma(p)
        a.label(f'L_dma{g}')
    vorder = list(range(NCOM, NMAX)) + list(range(NL, NCOM))
    for p in vorder: dep(cfg.vdepth); vload(p)
    lds_inc(L_CNTV, 1, 17)
    stamp('s_vissued')
    a(f's_waitcnt vmcnt({NMAX - NL})')
    for p in range(12): a(f'ds_read_b128 {vr(VR(p),4)}, v21 offset:{p*1024}')
    order = list(range(NL)) + vorder
    def abuild(k):
        p = order[k]; i, c = p // 4, p % 4
        for r in range(4):
            a(f'v_and_b32_dpp v{AT+4*(k%2)+r}, v{8+i}, v{MR+r} quad_perm:[{c},{c},{c},{c}] {DPP}')
    abuild(0)
    for k, p in enumerate(order):
        if k + 1 < NMAX: abuild(k + 1)
        if p >= NL: a(f's_waitcnt vmcnt({NMAX - 1 - k})')
        elif p < 4: a(f's_waitcnt lgkmcnt({11 - p + p})' if False else f's_waitcnt lgkmcnt({11})' if False else f's_waitcnt lgkmcnt({11 - p + min(p, 4)})')
        elif p < 12: a(f's_waitcnt lgkmcnt({15 - p})')
        else: a(f's_waitcnt lgkmcnt({15 - p})')
        a(f'v_mfma_f32_16x16x32_bf16 {vr(OA,4)}, {vr(AT+4*(k%2),4)}, {vr(VR(p) if p < NL else VD(p),4)}, ' + ('0' if k == 0 else vr(OA, 4)))
        if p < 4: a(f'ds_read_b128 {vr(VR(12+p),4)}, v21 offset:{(12+p)*1024}')
    a(f'ds_write_b128 v20, {vr(OA,4)} offset:{L_OPL}')
    stamp('s_end')
    lds_last(L_CNTB, 8, 1, 17, 'L_s_end')
    R0 = SL(0)
    for w in range(8): a(f'ds_read_b128 {vr(R0+4*w,4)}, v3 offset:{L_OPL+1024*w}')
    for w in range(0, 8, 2):
        a(f's_waitcnt lgkmcnt({6-w})')
        for h in (0, 2): a(f'v_pk_add_f32 {vr(R0+4*w+h,2)}, {vr(R0+4*w+h,2)}, {vr(R0+4+4*w+h,2)}')
    for st in (2, 4):
        for w in range(0, 8, 2 * st):
            for h in (0, 2): a(f'v_pk_add_f32 {vr(R0+4*w+h,2)}, {vr(R0+4*w+h,2)}, {vr(R0+4*(w+st)+h,2)}')
    a(f'buffer_store_dwordx4 {vr(R0,4)}, v3, s[12:15], s34 offen sc1')
    lds_inc(L_PUB, 1, 17)
    a.label('L_s_end')
    stamp('s_pub')
    if cfg.allw:
        i, j = cfg.allw
        a(f'''s_waitcnt lgkmcnt(0)
v_mov_b32 v2, s{84+2*i}
v_mov_b32 v3, s{84+2*j}
s_lshl_b32 s78, s2, 6
s_lshl_b32 s79, s3, 3
s_add_u32 s78, s78, s79
s_add_u32 s78, s78, {WS_ST}
v_mov_b32 v10, s78
s_mov_b64 exec, 1
buffer_store_dwordx2 v[2:3], v10, s[12:15], 0 offen''')
    elif cfg.stamps:
        a(f's_cmp_lg_u32 s3, {cfg.stwave}\ns_cbranch_scc1 L_end')
        store_stamps(1)
    if cfg.crit_d:
        a('s_endpgm')
        a.label('L_kslow')
        opt_setup()
        for p in range(NMAX):
            if p >= cfg.crit_d: a(f's_waitcnt vmcnt({cfg.crit_d-1})')
            if p >= 4:
                a(f'''ds_read_b32 v17, v0 offset:{L_REL}
s_waitcnt lgkmcnt(0)
v_readfirstlane_b32 s81, v17
s_cmp_lg_u32 s81, 0
s_cbranch_scc1 L_kf{p}''')
            kload(p)
        a(f's_branch L_kf{NMAX}')
    a.label('L_end')
    a('s_endpgm')
    a.items.append(('c', '.p2align 2'))
    a.label('L_table')
    tab = role_table(cfg)
    for i in range(0, 256, 8): a.items.append(('c', '.long ' + ', '.join(f'0x{t:08x}' for t in tab[i:i+8])))
    open(fname, 'w').write(build_file([(kn, a, 168, 102, None)], [(None, 256, 768, LDS_BYTES)]))

SS = dict(s_issued=1, s_q=2, s_qk=3, s_vissued=4, s_ml=5, s_end=6, s_pub=7)
HEAD = dict(start=0, c_karg=1, c_bar=2, c_w=3, c_mod=4, c_head=5, c_q=6, c_ml=7, **SS)
TAIL = dict(start=0, t_w=1, t_poll=2, f_bar1=3, f_bar2=4, t_pub=5, f_s5=6, c_end=7, **SS)
def mk(fname, **kw):
    c = Cfg()
    for k, v in kw.items(): setattr(c, k, v)
    gen(c, fname)
if __name__ == '__main__':
    PF = 27136
    D0 = dict(Q=7, M=5.5, Mc=0, F=0.8, O=4.5, w1=4.5)
    D2 = dict(Q=7, M=5.5, Mc=0, F=3.1, O=4.5, w1=4.5)
    mk('f18.s', codepf=PF, debt=D0)
    mk('f18_b.s', codepf=PF, debt=D0, w1_all=False)
    mk('f18_c.s', codepf=PF, debt=D2, w2_early=True)
    mk('f18_d.s', codepf=PF, debt=D0, pre_g=1, vdepth=5)
    mk('f18_e.s', codepf=PF, debt=D0, vdepth=0)
    mk('f18_f.s', codepf=PF, debt=D0, depth=5, pre_g=3)
    mk('f18_stt.s', stamps=TAIL, ctwave=2, codepf=PF, debt=D0)
    mk('f18_sttc.s', stamps=TAIL, ctwave=2, codepf=PF, debt=D2, w2_early=True)
    mk('f18_aw.s', stamps=HEAD, allw=(0, 7), codepf=PF, debt=D0)
```

```python
import sys
from asmlib import *

WS_MOD = 0x00000
WS_MOD2 = 0x04000
WS_Q   = 0x08000
WS_OP  = 0x10000
WS_X1P = 0x50000
WS_ML  = 0x5A000
WS_ARR = 0x5C000
WS_EP  = 0x5F000
WS_YP  = 0x60000
WS_ST  = 0x200000
L_CNTA, L_CNTB, L_QF, L_MLF, L_CNTH, L_CNTO, L_CNTF, L_CNTV, L_GO, L_ARR, L_PUB, L_CNTK, L_CNTL, L_REL = 0, 4, 8, 12, 16, 20, 24, 28, 32, 36, 40, 44, 48, 52
L_GML = 0x40
L_MW = 0x80
L_LW = 0xC0
L_Q   = 0x200
L_OPL = 0x400
L_RED = 0x2400
L_AV  = 0x3400
L_STAT = 0x4400
L_FIN = 0x4480
L_X1  = 0x4800
L_TD  = 0x5A00
L_V = 0x6000
LDS_BYTES = 0x26000
SPIN_LIMIT = 100000

class Cfg:
    nt = True
    stamps = None
    stwave = 0
    ctwave = 0
    pause = 99
    pause_wgs = 164
    vsched = (1, 2, 3, 4)
    codepf = 0
    touch = True
    thr_n = 0
    thr_d = 2
    modsleep = 2
    modgap = 16
    fw_after = True
    allw = None
    kgate = True
    pre_g = 2
    vdepth = 8
    w2_early = False
    s3sleep = 0
    s4sleep = 0
    s5sleep = 0
    depth = 4
    balance = True
    w1_all = False
    w1_none = True
    nohead = False
    notail = False
    qdelay = 3
    s5sets = 3
    s5first = 6
    pace_n = 3
    w2_dyn = True
    ml_early = True
    s5gap = 7
    debt = dict(Q=7, M=5.5, Mc=0, F=0.8, O=2.5, w1=4.5)
    crit_d = 0
    crit_pre = 1
    crit_max = 32
    vfirst = 8
    noround = False
    pre = 4
    earlybar = True
    w1_from = 78
    wo_at = 'V'
    qprio = None
    qsets = 3
    qsleep = 2
    cprio = 3

NMAX, NCOM = 35, 26
def role_table(cfg):
    D = cfg.debt
    info = []
    for w in range(256):
        p, sp = w & 31, w >> 5
        head, ht, tail, ti = 0, 0, 0, 0
        if sp == 7: head, ht = 1, p
        elif sp == 6: head, ht = 1, 32 + p
        elif sp == 0: head, ht = 2, p
        elif sp == 1 and p < 22: head, ht = 2, 32 + p
        if sp < 4: tail, ti = 1, w
        elif sp == 4: tail, ti = (2, p) if p < 16 else (1, w - 16)
        elif sp == 5: tail, ti = 2, 16 + p
        elif sp == 6 and p >= 8: tail, ti = 2, 40 + p
        if cfg.nohead: head, ht = 0, 0
        if cfg.notail: tail, ti = 0, 0
        crit = int(head == 1 or (head == 2 and ht < 18))
        w1e = int(tail == 1 and not cfg.w1_none and (cfg.w1_all or head == 0))
        d = {0: 0, 1: D['Q'], 2: D['M']}[head] + (D['Mc'] if head == 2 and crit else 0)
        d += {0: 0, 1: D['F'], 2: D['O']}[tail] + (D['w1'] if w1e else 0)
        info.append([head, ht, tail, ti, crit, w1e, d])
    tab = [0] * 256
    for p in range(32):
        ws_ = [p + 32 * sp for sp in range(8)]
        ds = [info[w][6] for w in ws_]
        n = [32] * 8
        if cfg.balance:
            n = [NCOM] * 8
            for _ in range(256 - 8 * NCOM):
                k = min((i for i in range(8) if n[i] < NMAX), key=lambda i: n[i] + ds[i])
                n[k] += 1
        st = 0
        for i, w in enumerate(ws_):
            h, ht, t, ti, cr, w1e, d = info[w]
            tab[w] = st | (n[i] - NCOM) << 8 | h << 12 | ht << 14 | t << 20 | ti << 22 | cr << 30 | w1e << 31
            st += n[i]
        assert st == 256
    return tab

def gen(cfg, fname):
    a = Asm()
    kn = NAME + '_kernel'
    NT = ' nt' if cfg.nt else ''
    PX, PK, PV, PWQ, PWO, PW1, PB1, PW2, PB2, PC, PWM, POUT, PDBG, PWS = 36, 38, 40, 42, 44, 48, 50, 52, 54, 56, 58, 60, 62, 64
    DPP = 'row_mask:0xf bank_mask:0xf'
    def stamp(name):
        if cfg.stamps and name in cfg.stamps:
            i = cfg.stamps[name]; a(f's_memrealtime s[{84+2*i}:{85+2*i}]')
    def store_stamps(slot):
        a('s_waitcnt lgkmcnt(0)')
        for i in range(8): a(f'v_mov_b32 v{2+i}, s{84+2*i}')
        a(f'''s_lshl_b32 s78, s2, 6
s_add_u32 s78, s78, {WS_ST + 32*slot}
v_mov_b32 v10, s78
s_mov_b64 exec, 1
buffer_store_dwordx4 v[2:5], v10, s[12:15], 0 offen
buffer_store_dwordx4 v[6:9], v10, s[12:15], 0 offen offset:16
s_mov_b64 exec, -1''')
    def chain_end():
        if cfg.stamps and not cfg.allw:
            a(f's_cmp_lg_u32 s3, {cfg.ctwave}\ns_cbranch_scc1 L_end')
            stamp('c_end'); store_stamps(0)
        a('s_endpgm')

    def lds_spin(off, target, vz, vt, sleep=1):
        L = a.newlabel('SP'); D = a.newlabel('SPD')
        a(f's_mov_b32 s80, 0')
        a.label(L)
        a(f'''ds_read_b32 v{vt}, v{vz} offset:{off}
s_waitcnt lgkmcnt(0)
v_readfirstlane_b32 s81, v{vt}
s_cmp_ge_u32 s81, {target}
s_cbranch_scc1 {D}
s_add_u32 s80, s80, 1
s_cmp_gt_u32 s80, {SPIN_LIMIT}
s_cbranch_scc1 {D}
s_sleep {sleep}
s_branch {L}''')
        a.label(D)
    def lds_inc(off, vz, vt):
        a(f'''s_waitcnt lgkmcnt(0)
v_mov_b32 v{vt}, 1
s_mov_b64 exec, 1
ds_add_u32 v{vz}, v{vt} offset:{off}
s_mov_b64 exec, -1''')
    def lds_last(off, n, vz, vt, skip_label):
        a(f'''v_mov_b32 v{vt}, 1
s_mov_b64 exec, 1
ds_add_rtn_u32 v{vt}, v{vz}, v{vt} offset:{off}
s_mov_b64 exec, -1
s_waitcnt lgkmcnt(0)
v_readfirstlane_b32 s81, v{vt}
s_cmp_lg_u32 s81, {n-1}
s_cbranch_scc1 {skip_label}''')

    def pend_poll(loads, sleep=0, hook=None):
        L = a.newlabel('PL'); D = a.newlabel('PLD')
        n = len(loads)
        a(f's_mov_b32 s80, 0\ns_mov_b32 s82, {(1 << n) - 1}')
        a.label(L)
        for k, (dst, nd, va, so, imm) in enumerate(loads):
            op = {2: 'dwordx2', 4: 'dwordx4'}[nd]; X = a.newlabel('PI')
            a(f's_bitcmp1_b32 s82, {k}\ns_cbranch_scc0 {X}')
            a(f'buffer_load_{op} {vr(dst, nd)}, v{va}, s[12:15], {so} offen offset:{imm} sc1')
            a.label(X)
        a('s_mov_b32 s81, s82\ns_waitcnt vmcnt(0)')
        for k, (dst, nd, va, so, imm) in enumerate(loads):
            X = a.newlabel('PC')
            a(f's_bitcmp1_b32 s81, {k}\ns_cbranch_scc0 {X}')
            a(f'v_cmp_u_f32 vcc, v{dst}, v{dst+1}')
            if nd == 4: a(f'v_cmp_u_f32 s[66:67], v{dst+2}, v{dst+3}\ns_or_b64 vcc, vcc, s[66:67]')
            else: a('s_cmp_lg_u64 vcc, 0')
            a(f's_cbranch_scc1 {X}\ns_bitset0_b32 s82, {k}')
            a.label(X)
        a(f'''s_cmp_eq_u32 s82, 0
s_cbranch_scc1 {D}
s_add_u32 s80, s80, 1
s_cmp_gt_u32 s80, {SPIN_LIMIT}
s_cbranch_scc1 {D}
s_bcnt1_i32_b32 s81, s82
s_cmp_le_u32 s81, {cfg.pace_n * n // 8}
s_cbranch_scc1 {L}''')
        if hook:
            a(f's_cmp_lg_u32 s83, 0\ns_cbranch_scc1 {L}')
            hook()
        a(f's_sleep {sleep}\ns_branch {L}')
        a.label(D)
        if hook:
            H = a.newlabel('PH')
            a(f's_cmp_lg_u32 s83, 0\ns_cbranch_scc1 {H}')
            hook()
            a.label(H)
    def sum_poll(groups, vt, hook=None):
        pend_poll([l for g in groups for l in g], cfg.s4sleep, hook)
        st = 1
        while st < 8:
            for g in groups:
                for i in range(0, len(g), 2 * st):
                    for h in range(0, g[0][1], 2):
                        a(f'v_pk_add_f32 {vr(g[i][0]+h,2)}, {vr(g[i][0]+h,2)}, {vr(g[i+st][0]+h,2)}')
            st *= 2

    def tpoll(loads, sleep=2, extra=None):
        L = a.newlabel('TP'); D = a.newlabel('TPD')
        a('s_mov_b32 s80, 0')
        a.label(L)
        for (dst, va, so, imm) in loads:
            a(f'buffer_load_dwordx4 {vr(dst,4)}, v{va}, s[12:15], {so} offen offset:{imm} sc1')
        a('s_waitcnt vmcnt(0)')
        for i, (dst, va, so, imm) in enumerate(loads):
            if i == 0: a(f'v_cmp_ne_u64 s[66:67], s[32:33], {vr(dst+2,2)}')
            else: a(f'v_cmp_ne_u64 vcc, s[32:33], {vr(dst+2,2)}\ns_or_b64 s[66:67], s[66:67], vcc')
        a(f'''s_cmp_eq_u64 s[66:67], 0
s_cbranch_scc1 {D}
s_add_u32 s80, s80, 1
s_cmp_gt_u32 s80, {SPIN_LIMIT}
s_cbranch_scc1 {D}
s_sleep {sleep}
s_branch {L}''')
        a.label(D)

    def poll_pipe(dst, loads, sets, gap=16, sleep=2):
        L = a.newlabel('PP'); n = len(sets); m = len(loads)
        Ds = [a.newlabel('PPD') for _ in sets]; E = a.newlabel('PPE')
        def ld(r):
            for k, (va, so) in enumerate(loads): a(f'buffer_load_dwordx4 {vr(r+4*k,4)}, v{va}, s[12:15], {so} offen sc1')
        a('s_mov_b32 s80, 0')
        for i, r in enumerate(sets):
            ld(r)
            if i + 1 < n: a(f's_sleep {gap}')
        a.label(L)
        for i, r in enumerate(sets):
            a(f's_waitcnt vmcnt({(n-1)*m})')
            if m == 1: a(f'v_cmp_ne_u64 vcc, s[32:33], {vr(r+2,2)}\ns_cbranch_vccz {Ds[i]}')
            else:
                a(f'v_cmp_ne_u64 s[66:67], s[32:33], {vr(r+2,2)}')
                for k in range(1, m): a(f'v_cmp_ne_u64 vcc, s[32:33], {vr(r+4*k+2,2)}\ns_or_b64 s[66:67], s[66:67], vcc')
                a(f's_cbranch_scc0 {Ds[i]}')
            a(f's_sleep {sleep}')
            ld(r)
        a(f'''s_add_u32 s80, s80, 1
s_cmp_gt_u32 s80, {SPIN_LIMIT}
s_cbranch_scc0 {L}''')
        for i, r in enumerate(sets):
            a.label(Ds[i])
            for k in range(m): a(f'v_mov_b32 v{dst+2*k}, v{r+4*k}\nv_mov_b32 v{dst+2*k+1}, v{r+4*k+1}')
            if i + 1 < n: a(f's_branch {E}')
        a.label(E)

    def wait_arrival(R):
        L = a.newlabel('AR'); D = a.newlabel('ARD')
        a(f'''s_mov_b32 s80, 0
v_lshlrev_b32 v2, 4, v1
s_mov_b32 s72, {WS_ARR}''')
        a.label(L)
        for i in range(4): a(f'buffer_load_dwordx2 {vr(R+2*i,2)}, v2, s[12:15], s72 offen offset:{1024*i} sc1')
        a('s_waitcnt vmcnt(0)')
        for i in range(4):
            if i == 0: a(f'v_cmp_ne_u64 s[66:67], s[32:33], {vr(R,2)}')
            else: a(f'v_cmp_ne_u64 vcc, s[32:33], {vr(R+2*i,2)}\ns_or_b64 s[66:67], s[66:67], vcc')
        a(f'''s_cbranch_scc0 {D}
s_add_u32 s80, s80, 1
s_cmp_gt_u32 s80, {SPIN_LIMIT}
s_cbranch_scc1 {D}
s_sleep 32
s_branch {L}''')
        a.label(D)

    def transpose8(R, T):
        for d in range(4):
            for dd in range(4):
                a(f'v_perm_b32 v{T+4*(2*d)+dd}, v{R+4*(2*dd+1)+d}, v{R+4*(2*dd)+d}, s78')
                a(f'v_perm_b32 v{T+4*(2*d+1)+dd}, v{R+4*(2*dd+1)+d}, v{R+4*(2*dd)+d}, s79')
    def transpose4(R, T):
        for d in range(4):
            for dd in range(2):
                a(f'v_perm_b32 v{T+2*(2*d)+dd}, v{R+4*(2*dd+1)+d}, v{R+4*(2*dd)+d}, s78')
                a(f'v_perm_b32 v{T+2*(2*d+1)+dd}, v{R+4*(2*dd+1)+d}, v{R+4*(2*dd)+d}, s79')
    def tr8(R, t0, t1):
        P = lambda dd, d: (R + 4 * (2 * dd) + d, R + 4 * (2 * dd + 1) + d)
        for d in range(4):
            x, y = P(d, d)
            a(f'v_perm_b32 v{t0}, v{y}, v{x}, s78\nv_perm_b32 v{y}, v{y}, v{x}, s79\nv_mov_b32 v{x}, v{t0}')
            for dd in range(d + 1, 4):
                x, y = P(dd, d); u, w = P(d, dd)
                a(f'''v_perm_b32 v{t0}, v{y}, v{x}, s78
v_perm_b32 v{t1}, v{y}, v{x}, s79
v_perm_b32 v{x}, v{w}, v{u}, s78
v_perm_b32 v{y}, v{w}, v{u}, s79
v_mov_b32 v{u}, v{t0}
v_mov_b32 v{w}, v{t1}''')
    def rnd(regs, tmps):
        prs = [(regs[i], regs[i + 1] if i + 1 < len(regs) else None) for i in range(0, len(regs), 2)]
        if isinstance(tmps, int): tmps = [tmps]
        for k in range(0, len(prs), len(tmps)):
            grp = prs[k:k + len(tmps)]
            for (x, y), t in zip(grp, tmps): a(f'v_cvt_pk_bf16_f32 v{t}, v{x}, v{y if y is not None else x}')
            for (x, y), t in zip(grp, tmps):
                a(f'v_lshlrev_b32 v{x}, 16, v{t}')
                if y is not None: a(f'v_and_b32 v{y}, 0xffff0000, v{t}')
    def unpack(src, dst):
        a(f'v_and_b32 v{dst+1}, 0xffff0000, v{src}')
        a(f'v_lshlrev_b32 v{dst}, 16, v{src}')
    def half_reduce(regs, tmps, op='v_add_f32'):
        for sh in (8, 4, 2, 1):
            for r in regs: a(f'{op}_dpp v{r}, v{r}, v{r} row_ror:{sh} {DPP}')
        for r, t in zip(regs, tmps): a(f'v_mov_b32 v{t}, v{r}')
        for r, t in zip(regs, tmps): a(f'v_permlane16_swap_b32 v{r}, v{t}')
        for r, t in zip(regs, tmps): a(f'{op} v{r}, v{r}, v{t}')
    def ln_finish(mean, var, t):
        rnd([mean, var], t)
        a(f'v_add_f32 v{var}, 0x3727c5ac, v{var}')
        rnd([var], t)
        a(f'v_sqrt_f32 v{var}, v{var}')
        rnd([var], t)
        a(f'v_rcp_f32 v{var}, v{var}')

    a(f'''s_cmp_ge_u32 s2, 256
s_cbranch_scc1 L_end
s_load_dwordx16 s[36:51], s[0:1], 0
s_load_dwordx8 s[52:59], s[0:1], 64
s_load_dwordx4 s[60:63], s[0:1], 96
s_load_dwordx2 s[64:65], s[0:1], 112
s_getpc_b64 s[66:67]
L_pc0:
s_lshl_b32 s68, s2, 2
s_add_u32 s66, s66, L_table-L_pc0
s_addc_u32 s67, s67, 0
s_load_dword s100, s[66:67], s68
v_lshrrev_b32 v2, 6, v0
v_and_b32 v1, 63, v0
v_readfirstlane_b32 s3, v2
v_mov_b32 v0, 0''')
    stamp('start')
    if cfg.earlybar:
        a('''s_cmp_lg_u32 s3, 0
s_cbranch_scc1 L_noinit0
v_lshlrev_b32 v2, 2, v1
ds_write_b32 v2, v0
s_waitcnt lgkmcnt(0)
L_noinit0:
s_barrier''')
    a('''s_cmp_ge_u32 s3, 4
s_cbranch_scc1 L_stream''')
    RAW, TR, RAW2, TR2, W2, W2X = 16, 48, 80, 96, 112, 80
    A, A2 = 144, 148
    RA, RB, RC, ACC, AA = 16, 48, 80, 112, 144
    XS = 156
    a(f"""s_setprio {cfg.cprio}
s_mov_b32 s78, 0x05040100
s_mov_b32 s79, 0x07060302
s_waitcnt lgkmcnt(0)
s_bfe_u32 s83, s100, 0x2000c
s_bfe_u32 s71, s100, 0x6000e
s_bfe_u32 s69, s100, 0x20014
s_bfe_u32 s101, s100, 0x80016
s_lshl_b32 s74, s3, 1
s_min_u32 s75, s3, 1
s_add_u32 s74, s74, s75
s_mov_b32 s70, 8192
s_cmp_eq_u32 s83, 2
s_cselect_b32 s70, 6912, s70
v_lshrrev_b32 v14, 4, v1
v_bfe_u32 v2, v1, 2, 1
v_lshl_add_u32 v14, v14, 1, v2
v_and_b32 v2, 1, v1
v_mul_u32_u24 v2, 1152, v2
v_lshl_add_u32 v6, v14, 4, v2
v_lshrrev_b32 v3, 3, v1
v_mul_lo_u32 v3, v3, s70
v_and_b32 v8, 7, v1
v_lshlrev_b32 v8, 4, v8
v_lshl_add_u32 v4, v3, 3, v8
s_lshl_b32 s72, s71, 7
s_lshl_b32 s73, s74, 6
s_mul_i32 s73, s73, s70
s_add_u32 s73, s73, s72
s_mul_i32 s75, s70, 56
s_lshl_b32 s74, s74, 7
s_waitcnt lgkmcnt(0)""")
    stamp('c_karg')
    srd(a, 12, PWS, SZ['ws'])
    a('s_cmp_lg_u32 s3, 3\ns_cbranch_scc1 L_c_nopz0')
    for r in range(4): a(f'v_mov_b32 v{112+r}, -1')
    a(f'''v_lshlrev_b32 v116, 4, v1
s_and_b32 s34, s2, 31
s_lshl_b32 s34, s34, 3
s_lshr_b32 s35, s2, 5
s_add_u32 s34, s34, s35
s_lshl_b32 s34, s34, 10
s_add_u32 s34, s34, {WS_OP}
buffer_store_dwordx4 v[112:115], v116, s[12:15], s34 offen sc1
s_cmp_lg_u32 s69, 1
s_cbranch_scc1 L_pz_o
s_mul_i32 s35, s101, 4608
s_add_u32 s35, s35, {WS_YP}
buffer_store_dwordx4 v[112:115], v116, s[12:15], s35 offen sc1
buffer_store_dwordx4 v[112:115], v116, s[12:15], s35 offen offset:1024 sc1
buffer_store_dwordx4 v[112:115], v116, s[12:15], s35 offen offset:2048 sc1
buffer_store_dwordx4 v[112:115], v116, s[12:15], s35 offen offset:3072 sc1
s_add_u32 s35, s35, 4096
s_mov_b32 exec_hi, 0
buffer_store_dwordx4 v[112:115], v116, s[12:15], s35 offen sc1
s_mov_b64 exec, -1
s_branch L_pz_done
L_pz_o:
s_cmp_lg_u32 s69, 2
s_cbranch_scc1 L_pz_done
s_mov_b32 s35, s101
s_mul_i32 s66, s35, 57
s_lshr_b32 s66, s66, 9
s_mul_i32 s67, s66, 9
s_sub_u32 s67, s35, s67
s_mul_i32 s35, s66, 4608
s_lshl_b32 s67, s67, 8
s_add_u32 s35, s35, s67
s_add_u32 s35, s35, {WS_X1P}
v_and_b32 v117, 15, v1
v_lshlrev_b32 v117, 4, v117
v_bfe_u32 v118, v1, 4, 1
v_mul_u32_u24 v118, 2304, v118
v_add_u32 v117, v117, v118
s_mov_b32 exec_hi, 0
buffer_store_dwordx4 v[112:115], v117, s[12:15], s35 offen sc1
s_mov_b64 exec, -1
L_pz_done:
L_c_nopz0:''')
    a(f"""s_mov_b32 s76, {WS_EP}
s_cmp_eq_u32 s83, 0
s_cbranch_scc1 L_nohead0
s_cmp_eq_u32 s83, 2
s_cselect_b32 s20, s{PWM}, s{PWQ}
s_cselect_b32 s21, s{PWM+1}, s{PWQ+1}
s_mov_b32 s22, {SZ['wq']}
s_cselect_b32 s22, {SZ['wmod']}, s22
s_mov_b32 s23, 0x00020000
s_cselect_b32 s28, s{PC}, s{PX}
s_cselect_b32 s29, s{PC+1}, s{PX+1}
s_mov_b32 s30, 2304
s_mov_b32 s31, 0x00020000
buffer_load_dwordx4 {vr(AA,4)}, v6, s[28:31], s74 offen
buffer_load_dwordx4 {vr(AA+4,4)}, v6, s[28:31], s74 offen offset:128
buffer_load_dwordx4 {vr(AA+8,4)}, v6, s[28:31], s74 offen offset:256
buffer_load_dwordx2 v[12:13], v0, s[12:15], s76 offen sc1
s_cbranch_scc1 L_h_w
v_lshrrev_b32 v2, 5, v1
v_mul_u32_u24 v2, 1152, v2
v_and_b32 v3, 31, v1
v_lshl_add_u32 v2, v3, 4, v2
buffer_load_dwordx4 {vr(XS,4)}, v2, s[28:31], 0 offen
buffer_load_dwordx4 {vr(XS+4,4)}, v2, s[28:31], 0 offen offset:512
v_mov_b32 v{XS+8}, 0
v_mov_b32 v{XS+9}, 0
v_mov_b32 v{XS+10}, 0
v_mov_b32 v{XS+11}, 0
s_mov_b32 exec_lo, 0xff
s_mov_b32 exec_hi, 0xff
buffer_load_dwordx4 {vr(XS+8,4)}, v2, s[28:31], 0 offen offset:1024
s_mov_b64 exec, -1
L_h_w:""")
    def blk_loads(R, last):
        for j in range(8):
            a(f'buffer_load_dwordx4 {vr(R+4*j,4)}, v4, s[20:23], s73 offen{NT}')
            a('s_add_u32 s73, s73, s70')
        if not last: a('s_add_u32 s73, s73, s75')
    blk_loads(RA, False); blk_loads(RB, False)
    a('s_cmp_lg_u32 s3, 0\ns_cbranch_scc1 L_h_w2')
    blk_loads(RC, True)
    a.label('L_h_w2')
    stamp('c_bar')
    def get_tag():
        a("""v_readfirstlane_b32 s32, v12
v_readfirstlane_b32 s33, v13
s_add_u32 s32, s32, 1
s_addc_u32 s33, s33, 0""")
    a('s_waitcnt vmcnt(16)')
    get_tag()
    a('s_cmp_eq_u32 s83, 1\ns_cbranch_scc1 L_hq')
    a('s_mov_b32 s82, 0xbfb8aa3b')
    for r in range(AA, AA + 12, 2):
        unpack(r, 2); unpack(r + 1, 4)
        for i in range(4): a(f'v_mul_f32 v{6+i}, s82, v{2+i}')
        for i in range(4): a(f'v_exp_f32 v{6+i}, v{6+i}')
        for i in range(4): a(f'v_add_f32 v{6+i}, 1.0, v{6+i}')
        for i in range(4): a(f'v_rcp_f32 v{6+i}, v{6+i}')
        for i in range(4): a(f'v_mul_f32 v{2+i}, v{2+i}, v{6+i}')
        a(f'v_cvt_pk_bf16_f32 v{r}, v2, v3\nv_cvt_pk_bf16_f32 v{r+1}, v4, v5')
    def head_tr():
        a('s_waitcnt vmcnt(8)')
        tr8(RA, 2, 3)
        a('s_waitcnt vmcnt(0)')
        stamp('c_w')
        tr8(RB, 2, 3)
        X = a.newlabel('HT')
        a(f's_cmp_lg_u32 s3, 0\ns_cbranch_scc1 {X}')
        tr8(RC, 2, 3)
        a.label(X)
    head_tr()
    a.label('L_hgemv')
    def g8_addr(v, t):
        a(f"""v_and_b32 v{v}, 7, v1
v_lshlrev_b32 v{v}, 6, v{v}
v_lshrrev_b32 v{t}, 4, v1
v_lshl_add_u32 v{v}, v{t}, 9, v{v}
s_lshl_b32 s72, s3, 10
v_add_u32 v{v}, s72, v{v}""")
    def g8_write(v, D):
        a('s_mov_b32 exec_lo, 0xff0000ff\ns_mov_b32 exec_hi, 0')
        for e in range(8): a(f'ds_write_b64 v{v}, {vr(D+4*e,2)} offset:{L_RED+8*e}')
        a('s_mov_b64 exec, -1')
    def g8_sum(T, va):
        for p in range(8): a(f'ds_read_b64 {vr(T+2*p,2)}, v{va} offset:{L_RED+512*p}')
        for p in range(0, 8, 2):
            a(f's_waitcnt lgkmcnt({6-p})')
            a(f'v_pk_add_f32 {vr(T+2*p,2)}, {vr(T+2*p,2)}, {vr(T+2*p+2,2)}')
        a(f"""v_pk_add_f32 {vr(T,2)}, {vr(T,2)}, {vr(T+4,2)}
v_pk_add_f32 {vr(T+8,2)}, {vr(T+8,2)}, {vr(T+12,2)}
v_pk_add_f32 {vr(T,2)}, {vr(T,2)}, {vr(T+8,2)}""")
    for e in range(8): a(f'v_mfma_f32_16x16x32_bf16 {vr(ACC+4*e,4)}, {vr(AA,4)}, {vr(RA+4*e,4)}, 0')
    for e in range(8): a(f'v_mfma_f32_16x16x32_bf16 {vr(ACC+4*e,4)}, {vr(AA+4,4)}, {vr(RB+4*e,4)}, {vr(ACC+4*e,4)}')
    a('s_cmp_lg_u32 s3, 0\ns_cbranch_scc1 L_hg2')
    for e in range(8): a(f'v_mfma_f32_16x16x32_bf16 {vr(ACC+4*e,4)}, {vr(AA+8,4)}, {vr(RC+4*e,4)}, {vr(ACC+4*e,4)}')
    a.label('L_hg2')
    g8_addr(2, 3)
    a('v_lshlrev_b32 v9, 3, v1')
    g8_write(2, ACC)
    lds_last(L_CNTH, 4, 0, 2, 'L_head_done')
    g8_sum(RA, 9)
    a(f"""v_mov_b32 v6, s32
v_mov_b32 v7, s33
s_cmp_eq_u32 s83, 2
s_cbranch_scc1 L_hs_m
v_mov_b32 v10, s32
v_mov_b32 v11, s33
v_mov_b32_dpp v2, v{RA} quad_perm:[1,0,3,2] {DPP}
v_mov_b32_dpp v3, v{RA+1} quad_perm:[1,0,3,2] {DPP}
v_cvt_pk_bf16_f32 v4, v{RA}, v2
v_cvt_pk_bf16_f32 v8, v{RA+1}, v3
v_mov_b32_dpp v5, v4 quad_perm:[2,3,0,1] {DPP}
v_mov_b32_dpp v9, v8 quad_perm:[2,3,0,1] {DPP}
v_lshlrev_b32 v2, 2, v1
s_lshl_b32 s72, s71, 8
s_add_u32 s72, s72, {WS_Q}
s_add_u32 s73, s72, 16384
s_mov_b32 exec_lo, 0x11111111
s_mov_b32 exec_hi, 0x11111111
buffer_store_dwordx4 v[4:7], v2, s[12:15], s72 offen sc1
buffer_store_dwordx4 v[8:11], v2, s[12:15], s73 offen sc1
s_mov_b64 exec, 1
v_mov_b32 v2, 1
ds_write_b32 v0, v2 offset:{L_REL}
s_mov_b64 exec, -1
s_branch L_head_done
L_hs_m:
v_cvt_pk_bf16_f32 v4, v{RA}, v{RA+1}
s_cmp_ge_u32 s71, 18
s_cbranch_scc1 L_hs_m2
v_mov_b32_dpp v5, v4 quad_perm:[1,0,3,2] {DPP}
s_lshl_b32 s72, s71, 9
s_add_u32 s72, s72, {WS_MOD}
s_mov_b32 exec_lo, 0x55555555
s_mov_b32 exec_hi, 0x55555555
buffer_store_dwordx4 v[4:7], v9, s[12:15], s72 offen sc1
s_mov_b64 exec, 1
v_mov_b32 v2, 1
ds_write_b32 v0, v2 offset:{L_REL}
s_mov_b64 exec, -1
s_branch L_head_done
L_hs_m2:
v_lshlrev_b32 v2, 2, v1
s_lshl_b32 s72, s71, 8
s_add_u32 s72, s72, {WS_MOD2 - 18*256}
buffer_store_dword v4, v2, s[12:15], s72 offen sc1
s_waitcnt vmcnt(0)""")
    lds_inc(L_GO, 0, 2)
    a('s_branch L_head_done')
    a.label('L_hq')
    N0 = ACC
    for i in range(12): unpack(XS + i, N0 + 2 * i)
    a(f'v_pk_add_f32 v[2:3], {vr(N0,2)}, {vr(N0+2,2)}')
    for i in range(4, 24, 2): a(f'v_pk_add_f32 v[2:3], v[2:3], {vr(N0+i,2)}')
    a('v_add_f32 v2, v2, v3')
    half_reduce([2], [3])
    a('s_mov_b32 s82, 0x3ae38e39\nv_mul_f32 v2, s82, v2')
    a('v_and_b32 v4, 31, v1\nv_cmp_gt_u32 vcc, 8, v4')
    for i in range(24): a(f'v_sub_f32 v{N0+i}, v{N0+i}, v2')
    for i in range(16, 24): a(f'v_cndmask_b32 v{N0+i}, 0, v{N0+i}, vcc')
    a(f'v_mul_f32 v3, v{N0}, v{N0}')
    for i in range(1, 24): a(f'v_fmac_f32 v3, v{N0+i}, v{N0+i}')
    half_reduce([3], [4])
    a('v_mul_f32 v3, s82, v3')
    ln_finish(2, 3, 4)
    a("""v_readlane_b32 s72, v2, 0
v_readlane_b32 s73, v2, 32
v_readlane_b32 s76, v3, 0
v_readlane_b32 s75, v3, 32
s_mov_b32 s66, 0xaaaaaaaa
s_mov_b32 s67, 0xaaaaaaaa
v_mov_b32 v12, s72
v_mov_b32 v13, s73
v_cndmask_b32 v12, v12, v13, s[66:67]
v_mov_b32 v13, s76
v_mov_b32 v2, s75
v_cndmask_b32 v13, v13, v2, s[66:67]""")
    NV = list(range(N0, N0 + 24))
    for i in range(12): unpack(AA + i, N0 + 2 * i)
    for r in NV: a(f'v_sub_f32 v{r}, v{r}, v12')
    rnd(NV, [2, 3, 4, 5])
    for r in NV: a(f'v_mul_f32 v{r}, v{r}, v13')
    rnd(NV, [2, 3, 4, 5])
    head_tr()
    a('s_cmp_lg_u32 s3, 3\ns_cbranch_scc1 L_q_nopz')
    a(f'''v_mov_b32 v10, s32
v_mov_b32 v11, s33
s_lshl_b32 s35, s2, 4
s_add_u32 s35, s35, {WS_ARR}
s_branch L_q_pzgo''')
    lds_spin(L_GO, 1, 0, 2, sleep=4)
    a(f'''L_q_pzgo:
s_waitcnt vmcnt(0)
s_mov_b64 exec, 1
buffer_store_dwordx2 v[10:11], v0, s[12:15], s35 offen sc1
s_mov_b64 exec, -1''')
    lds_inc(L_CNTA, 0, 2)
    a.label('L_q_nopz')
    a(f"""v_lshlrev_b32 v4, 4, v1
v_lshrrev_b32 v5, 5, v1
v_mul_u32_u24 v5, {4608 - 512}, v5
v_add_u32 v5, v5, v4
s_lshl_b32 s72, s74, 2
s_add_u32 s72, s72, {WS_MOD}
s_add_u32 s73, s72, 4608
s_mov_b32 s76, {WS_MOD + 1024}
v_and_b32 v6, 1, v1
v_lshlrev_b32 v6, 4, v6
v_sub_u32 v6, 16, v6
s_lshl_b32 s75, s3, 10
s_add_u32 s75, s75, {L_X1}
v_lshlrev_b32 v7, 3, v1
v_add_u32 v8, s75, v7
v_lshlrev_b32 v10, 5, v14
v_add_u32 v9, s75, v10
s_cmp_eq_u32 s3, 0
s_cbranch_scc1 L_hq_x""")
    tpoll([(XS, 4, 's72', 0), (XS + 4, 4, 's73', 0)], sleep=cfg.modsleep)
    a('s_branch L_hq_j')
    a.label('L_hq_x')
    tpoll([(XS, 4, 's72', 0), (XS + 4, 4, 's73', 0), (XS + 8, 5, 's76', 0)], sleep=cfg.modsleep)
    a(f'ds_write_b64 v7, {vr(XS+8,2)} offset:{L_TD}')
    a.label('L_hq_j')
    stamp('c_mod')
    a(f'ds_write_b64 v8, {vr(XS,2)}\nds_write_b64 v8, {vr(XS+4,2)} offset:512\ns_waitcnt lgkmcnt(0)')
    SAr = list(range(136, 144)); CAr = list(range(XS, XS + 8))
    for k in range(3):
        va, o1, o2 = (9, 256 * k, 512 + 256 * k) if k < 2 else (10, L_TD, L_TD + 256)
        a(f"""ds_read_b128 {vr(CAr[0],4)}, v{va} offset:{o2}
ds_read_b128 {vr(CAr[4],4)}, v{va} offset:{o2+16}
ds_read_b128 {vr(SAr[0],4)}, v{va} offset:{o1}
ds_read_b128 {vr(SAr[4],4)}, v{va} offset:{o1+16}
s_waitcnt lgkmcnt(2)""")
        nv = NV[8 * k:8 * k + 8]
        for r in CAr: a(f'v_lshlrev_b32 v{r}, v6, v{r}')
        for r in CAr: a(f'v_and_b32 v{r}, 0xffff0000, v{r}')
        for r in CAr: a(f'v_add_f32 v{r}, 1.0, v{r}')
        rnd(CAr, [2, 3, 4, 5])
        for i in range(0, 8, 2): a(f'v_pk_mul_f32 {vr(nv[i],2)}, {vr(nv[i],2)}, {vr(CAr[i],2)}')
        rnd(nv, [2, 3, 4, 5])
        a('s_waitcnt lgkmcnt(0)')
        for r in SAr: a(f'v_lshlrev_b32 v{r}, v6, v{r}')
        for r in SAr: a(f'v_and_b32 v{r}, 0xffff0000, v{r}')
        for i in range(0, 8, 2): a(f'v_pk_add_f32 {vr(nv[i],2)}, {vr(nv[i],2)}, {vr(SAr[i],2)}')
        for i in range(4): a(f'v_cvt_pk_bf16_f32 v{AA+4*k+i}, v{nv[2*i]}, v{nv[2*i+1]}')
        if k == 1: a('s_cmp_lg_u32 s3, 0\ns_cbranch_scc1 L_hgemv')
    a('s_branch L_hgemv')
    a.label('L_nohead0')
    a('buffer_load_dwordx2 v[12:13], v0, s[12:15], s76 offen sc1')
    if cfg.codepf:
        a(f"""s_sub_u32 s72, s2, 160
s_cmp_ge_u32 s72, 16
s_cbranch_scc1 L_nopf
s_getpc_b64 s[72:73]
L_pc:
s_sub_u32 s72, s72, L_pc-{kn}
s_subb_u32 s73, s73, 0
v_lshlrev_b32 v2, 4, v1
s_lshl_b32 s74, s3, 10
v_add_u32 v2, s74, v2""")
        for i in range((cfg.codepf + 4095) // 4096):
            a(f"""v_cmp_gt_u32 vcc, {cfg.codepf - 16 - 4096*i + 1}, v2
s_and_saveexec_b64 s[66:67], vcc
s_cbranch_execz L_pf{i}
global_load_dwordx4 {vr(RAW+4*i,4)}, v2, s[72:73]
L_pf{i}:
s_mov_b64 exec, -1
s_add_u32 s72, s72, 4096
s_addc_u32 s73, s73, 0""")
        a.label('L_nopf')
    a('s_waitcnt vmcnt(0)')
    get_tag()
    def narrow_issue(srdn, xwave):
        for j in range(8):
            a(f'buffer_load_dwordx4 {vr(RAW+4*j,4)}, v4, s[{srdn}:{srdn+3}], s73 offen{NT}')
            if j < 7: a('s_add_u32 s73, s73, s70')
        X = a.newlabel('NX')
        a(f"""s_cmp_lg_u32 s3, {xwave}
s_cbranch_scc1 {X}
s_lshl_b32 s73, s70, 9
s_add_u32 s73, s73, s72""")
        for j in range(4):
            a(f'buffer_load_dwordx4 {vr(RAW2+4*j,4)}, v5, s[{srdn}:{srdn+3}], s73 offen{NT}')
            if j < 3: a('s_add_u32 s73, s73, s70')
        a.label(X)
    def narrow_addr(v):
        a(f"""v_lshrrev_b32 v{v}, 4, v1
v_and_b32 v3, 3, v1
v_lshlrev_b32 v3, 6, v3
v_lshl_add_u32 v{v}, v{v}, 8, v3
s_lshl_b32 s72, s3, 10
v_add_u32 v{v}, s72, v{v}""")
    def narrow_write(v):
        a('s_mov_b32 exec_lo, 0x00f0000f\ns_mov_b32 exec_hi, 0xf0000f00')
        for e in range(8): a(f'ds_write_b64 v{v}, {vr(RAW+4*e,2)} offset:{L_RED+8*e}')
        a('s_mov_b64 exec, -1')
    def narrow_sum(dst, va):
        for p in range(16): a(f'ds_read_b32 v{TR+p}, v{va} offset:{L_RED+256*p}')
        for p in range(0, 16, 4):
            a(f's_waitcnt lgkmcnt({12-p})')
            a(f'v_pk_add_f32 {vr(TR+p,2)}, {vr(TR+p,2)}, {vr(TR+p+2,2)}')
        a(f"""v_pk_add_f32 {vr(TR,2)}, {vr(TR,2)}, {vr(TR+4,2)}
v_pk_add_f32 {vr(TR+8,2)}, {vr(TR+8,2)}, {vr(TR+12,2)}
v_pk_add_f32 {vr(TR,2)}, {vr(TR,2)}, {vr(TR+8,2)}
v_add_f32 v{dst}, v{TR}, v{TR+1}""")
    a.label('L_head_done')
    stamp('c_head')
    PS = (TR, TR + 4, TR + 8)
    a(f'''s_cmp_lg_u32 s3, 0
s_cbranch_scc1 L_c_noq
v_lshlrev_b32 v4, 4, v1
v_lshlrev_b32 v5, 3, v1
s_and_b32 s72, s2, 31
s_lshl_b32 s72, s72, 10
s_add_u32 s72, s72, {WS_Q}''')
    if cfg.qprio is not None: a(f's_setprio {cfg.qprio}')
    if cfg.nohead: a(f's_sleep 127\n' * cfg.qdelay + 'v_mov_b32 v6, 0\nv_mov_b32 v7, 0')
    else: poll_pipe(6, [(4, 's72')], PS[:cfg.qsets], sleep=cfg.qsleep)
    a(f's_setprio {cfg.cprio}')
    a(f'ds_write_b64 v5, v[6:7] offset:{L_Q}')
    lds_inc(L_QF, 0, 2)
    stamp('c_q')
    a.label('L_c_noq')
    a('s_cmp_eq_u32 s83, 1\ns_cbranch_scc1 L_c_nopz')
    a('s_cmp_lg_u32 s3, 3\ns_cbranch_scc1 L_c_nopz')
    a(f'''v_mov_b32 v10, s32
v_mov_b32 v11, s33
s_lshl_b32 s35, s2, 4
s_add_u32 s35, s35, {WS_ARR}
s_cmp_lg_u32 s83, 2
s_cbranch_scc1 L_pz_go
s_bitcmp1_b32 s100, 30
s_cbranch_scc1 L_pz_go''')
    lds_spin(L_GO, 1, 0, 2, sleep=4)
    a(f'''L_pz_go:
s_waitcnt vmcnt(0)
s_mov_b64 exec, 1
buffer_store_dwordx2 v[10:11], v0, s[12:15], s35 offen sc1
s_mov_b64 exec, -1''')
    lds_inc(L_CNTA, 0, 2)
    a.label('L_c_nopz')
    a('s_cmp_lg_u32 s3, 1\ns_cbranch_scc1 L_c_noarr')
    lds_spin(L_QF, 1, 0, 2, sleep=8)
    wait_arrival(TR)
    lds_inc(L_ARR, 0, 2)
    a.label('L_c_noarr')
    a('s_cmp_lg_u32 s3, 0\ns_cbranch_scc1 L_c_mid')
    a(f'''s_and_b32 s72, s2, 31
s_lshl_b32 s72, s72, 8
s_lshr_b32 s73, s2, 5
s_lshl_b32 s73, s73, 5
s_add_u32 s73, s73, s72
s_add_u32 s73, s73, {WS_ML}
v_and_b32 v5, 8, v1
v_lshlrev_b32 v3, 1, v5
v_mov_b32 v10, s32
v_mov_b32 v11, s33
v_and_b32 v12, 15, v1
v_lshlrev_b32 v12, 2, v12''')
    lds_spin(L_CNTL, 8, 0, 2, sleep=4)
    a(f'''ds_read_b32 v8, v12 offset:{L_MW}
ds_read_b32 v9, v12 offset:{L_LW}
s_waitcnt lgkmcnt(0)
v_max_f32_dpp v8, v8, v8 quad_perm:[1,0,3,2] {DPP}
v_add_f32_dpp v9, v9, v9 quad_perm:[1,0,3,2] {DPP}
v_max_f32_dpp v8, v8, v8 quad_perm:[2,3,0,1] {DPP}
v_add_f32_dpp v9, v9, v9 quad_perm:[2,3,0,1] {DPP}
v_max_f32_dpp v8, v8, v8 row_half_mirror {DPP}
v_add_f32_dpp v9, v9, v9 row_half_mirror {DPP}
s_mov_b64 exec, 0x101
buffer_store_dwordx4 v[8:11], v3, s[12:15], s73 offen sc1
s_mov_b64 exec, -1
s_waitcnt vmcnt(0)''')
    stamp('c_ml')
    a.label('L_c_mid')
    a('''s_cmp_eq_u32 s69, 0
s_cbranch_scc1 L_t_none
s_cmp_eq_u32 s69, 2
s_cbranch_scc1 L_t_o''')
    XW = 3
    srd(a, 16, PW1, SZ['w1'])
    def w1_issue():
        a(f'''s_mov_b32 s70, 9216
v_lshrrev_b32 v2, 2, v1
v_and_b32 v8, 3, v1
v_lshlrev_b32 v8, 4, v8
v_mul_u32_u24 v3, 9216, v2
v_lshl_add_u32 v4, v3, 3, v8
v_lshl_add_u32 v5, v3, 2, v8
s_lshl_b32 s72, s101, 6
s_mul_i32 s73, s3, {128*9216}
s_add_u32 s73, s73, s72''')
        narrow_issue(16, XW)
    a('s_bitcmp0_b32 s100, 31\ns_cbranch_scc1 L_f_w1e')
    lds_spin(L_CNTK, 8, 0, 2, sleep=8)
    w1_issue()
    a.label('L_f_w1e')
    XW = 3
    PM, PE = 144, 160
    B1R, GBR, B2R = 13, 14, 15
    srd(a, 28, PX, SZ['x']); srd(a, 20, PB1, SZ['b1']); srd(a, 24, PB2, SZ['b2'])
    G = W2
    a(f"""s_min_u32 s77, s101, 35
s_cmp_ge_u32 s77, 18
s_cselect_b32 s76, 1, 0
s_mul_i32 s72, s76, 18
s_sub_u32 s77, s77, s72
v_and_b32 v3, 31, v1
v_lshlrev_b32 v4, 4, v3
v_lshlrev_b32 v5, 3, v3
v_lshrrev_b32 v6, 5, v1
v_mul_u32_u24 v6, 1152, v6
v_lshl_add_u32 v7, v3, 3, v6
v_lshl_add_u32 v6, v3, 2, v6
s_lshl_b32 s71, s3, 8
v_lshrrev_b32 v2, 1, v1
v_lshlrev_b32 v2, 1, v2
v_lshlrev_b32 v9, 1, v3
v_lshlrev_b32 v8, 2, v3
s_lshl_b32 s70, s77, 7
s_add_u32 s70, s70, {WS_MOD2 + 1728*4}
s_lshl_b32 s72, s3, 9
s_add_u32 s72, s72, {WS_MOD2}
s_add_u32 s73, s72, 4608
s_mov_b32 s74, {WS_MOD2 + 2048}
s_mov_b32 s75, {WS_MOD2 + 2048 + 4608}
s_lshl_b32 s4, s101, 6
s_lshl_b32 s5, s77, 6""")
    lds_spin(L_ARR, 1, 0, 3, sleep=4)
    a(f"""buffer_load_dwordx4 {vr(G,4)}, v4, s[12:15], s72 offen sc1
buffer_load_dwordx4 {vr(G+4,4)}, v4, s[12:15], s72 offen offset:2304 sc1
buffer_load_dwordx4 {vr(G+8,4)}, v4, s[12:15], s73 offen sc1
buffer_load_dwordx2 {vr(G+12,2)}, v5, s[12:15], s74 offen sc1
buffer_load_dwordx2 {vr(G+14,2)}, v5, s[12:15], s74 offen offset:2304 sc1
buffer_load_dwordx2 {vr(G+16,2)}, v5, s[12:15], s75 offen sc1
buffer_load_dword v{GBR}, v8, s[12:15], s70 offen sc1
buffer_load_dwordx2 {vr(G+18,2)}, v7, s[28:31], s71 offen
buffer_load_dword v{G+20}, v6, s[28:31], 0 offen offset:1024
buffer_load_ushort v{B1R}, v2, s[20:23], s4 offen
buffer_load_ushort v{B2R}, v9, s[24:27], s5 offen
v_lshrrev_b32 v2, 5, v1
v_lshlrev_b32 v2, 4, v2
v_sub_u32 v2, 16, v2
s_waitcnt vmcnt(0)""")
    gav = [G + i for i in range(4)] + [G + 12, G + 13]
    sbv = [G + 4 + i for i in range(4)] + [G + 14, G + 15]
    cbv = [G + 8 + i for i in range(4)] + [G + 16, G + 17]
    PXr = [PM + i for i in range(4)] + [PE, PE + 1]
    PGr = [PM + 4 + i for i in range(4)] + [PE + 2, PE + 3]
    PCr = [PM + 8 + i for i in range(4)] + [PE + 4, PE + 5]
    PSr = [PM + 12 + i for i in range(4)] + [PE + 6, PE + 7]
    for src, dst in zip(gav + sbv + cbv, PGr + PSr + PCr):
        a(f'v_lshlrev_b32 v{src}, v2, v{src}\nv_and_b32 v{dst}, 0xffff0000, v{src}')
    for r in PCr: a(f'v_add_f32 v{r}, 1.0, v{r}')
    rnd(PCr, [3, 4, 5])
    unpack(G + 18, PM); unpack(G + 19, PM + 2); unpack(G + 20, PE)
    a(f"""s_lshl_b32 s72, s76, 4
s_sub_u32 s72, 16, s72
v_lshlrev_b32 v{GBR}, s72, v{GBR}
v_and_b32 v{GBR}, 0xffff0000, v{GBR}
v_lshlrev_b32 v{B1R}, 16, v{B1R}
v_lshlrev_b32 v{B2R}, 16, v{B2R}""")
    srd(a, 24, PW2, SZ['w2'])
    a('s_bitcmp1_b32 s100, 31\ns_cbranch_scc1 L_f_w1d')
    lds_spin(L_PUB, 1, 0, 7, sleep=1)
    w1_issue()
    a.label('L_f_w1d')
    def w2_issue():
        X = a.newlabel('W2X')
        a(f'''v_lshrrev_b32 v2, 4, v1
v_mul_u32_u24 v2, 1152, v2
v_and_b32 v3, 15, v1
v_lshl_add_u32 v2, v3, 4, v2
s_mul_i32 s70, s101, {32*1152}
s_lshl_b32 s71, s3, 8
s_add_u32 s71, s71, s70
s_mov_b32 s83, 1''')
        for jj in range(8):
            a(f'buffer_load_dwordx4 {vr(W2+4*jj,4)}, v2, s[24:27], s71 offen{NT}')
            if jj < 7: a('s_add_u32 s71, s71, 4608')
        a(f'''s_cmp_lg_u32 s3, 2
s_cbranch_scc1 {X}
s_add_u32 s71, s70, 1024
s_mov_b32 exec_lo, 0x00ff00ff
s_mov_b32 exec_hi, 0x00ff00ff''')
        for jj in range(8):
            a(f'buffer_load_dwordx4 {vr(W2X+4*jj,4)}, v2, s[24:27], s71 offen{NT}')
            if jj < 7: a('s_add_u32 s71, s71, 4608')
        a('s_mov_b64 exec, -1')
        a.label(X)
    a('s_mov_b32 s83, 0')
    if not cfg.w2_dyn:
        lds_spin(L_PUB, 1, 0, 7, sleep=1)
        w2_issue()
    a(f'''v_lshrrev_b32 v2, 5, v1
v_lshlrev_b32 v7, 5, v2
v_mul_u32_u24 v2, 2304, v2
v_and_b32 v3, 31, v1
v_lshl_add_u32 v4, v3, 4, v2
v_lshl_add_u32 v5, v3, 3, v2
s_lshl_b32 s72, s3, 9
v_add_u32 v4, s72, v4
v_add_u32 v5, 2048, v5
s_lshl_b32 s72, s3, 3
v_add_u32 v6, s72, v7
s_lshl_b32 s72, s3, 10
s_add_u32 s72, s72, {L_AV}
v_lshlrev_b32 v8, 3, v1
v_add_u32 v8, s72, v8
v_lshrrev_b32 v2, 2, v1
v_and_b32 v3, 1, v1
v_lshlrev_b32 v9, 8, v3
v_lshl_add_u32 v9, v2, 4, v9
v_add_u32 v9, s72, v9
v_lshlrev_b32 v11, 2, v1
s_lshl_b32 s72, s3, 8
s_add_u32 s72, s72, {L_TD}
v_and_b32 v12, 1, v1
v_lshlrev_b32 v12, 7, v12
v_bfe_u32 v2, v1, 1, 2
v_lshl_add_u32 v12, v2, 5, v12
v_lshrrev_b32 v2, 3, v1
v_lshl_add_u32 v12, v2, 2, v12
v_add_u32 v12, s72, v12''')
    narrow_addr(10)
    for r in range(8): a(f's_mov_b32 s{4+r}, {WS_X1P + 4608*r}')
    SO = lambda r: f's{4+r}'
    srd(a, 28, POUT, SZ['out'])
    a('s_waitcnt vmcnt(0)' if cfg.w2_dyn else 's_waitcnt vmcnt(8)')
    transpose8(RAW, TR)
    a(f's_cmp_lg_u32 s3, {XW}\ns_cbranch_scc1 L_f_nx')
    transpose4(RAW2, TR2)
    a.label('L_f_nx')
    a('s_waitcnt vmcnt(0)')
    stamp('t_w')
    lds_spin(L_PUB, 1, 0, 2, sleep=2)
    a(f's_cmp_eq_u32 s3, {XW}\ns_cbranch_scc1 L_f_x')
    def f_phase1(x):
        n = 6 if x else 4
        X = [RAW + i for i in range(4)] + ([RAW2, RAW2 + 1] if x else [])
        prs = [X[i] for i in range(0, n, 2)]
        T3 = [RAW + 8, RAW + 9, RAW + 10]
        grp = [[(RAW + 4 * r, 4, 4, SO(r), 0) for r in range(8)]]
        if x: grp.append([(RAW2 + 2 * r, 2, 5, SO(r), 0) for r in range(8)])
        sum_poll(grp, 2, w2_issue if cfg.w2_dyn else None)
        stamp('t_poll')
        rnd(X, T3)
        for i, p in enumerate(prs): a(f'v_pk_mul_f32 {vr(p,2)}, {vr(p,2)}, {vr(PGr[2*i],2)}')
        rnd(X, T3)
        for i, p in enumerate(prs): a(f'v_pk_add_f32 {vr(p,2)}, {vr(p,2)}, {vr(PXr[2*i],2)}')
        rnd(X, T3)
        D = [RAW + 12 + i for i in range(6)]
        a(f'''v_readlane_b32 s72, v{RAW}, 0
v_readlane_b32 s73, v{RAW}, 32
ds_write_b128 v4, {vr(RAW,4)} offset:{L_X1}''')
        if x: a(f'ds_write_b64 v5, {vr(RAW2,2)} offset:{L_X1}')
        K = RAW + 18
        a(f'''v_mov_b32 v{K}, s72
v_mov_b32 v{K+1}, s73
s_mov_b32 s66, 0
s_mov_b32 s67, -1
v_cndmask_b32 v{K}, v{K}, v{K+1}, s[66:67]''')
        for i in range(n): a(f'v_sub_f32 v{D[i]}, v{X[i]}, v{K}')
        S1, S2 = RAW + 20, RAW + 22
        a(f'v_pk_add_f32 {vr(S1,2)}, {vr(D[0],2)}, {vr(D[2],2)}')
        a(f'v_pk_mul_f32 {vr(S2,2)}, {vr(D[0],2)}, {vr(D[0],2)}')
        a(f'v_pk_fma_f32 {vr(S2,2)}, {vr(D[2],2)}, {vr(D[2],2)}, {vr(S2,2)}')
        if x:
            a(f'v_pk_add_f32 {vr(S1,2)}, {vr(S1,2)}, {vr(D[4],2)}')
            a(f'v_pk_fma_f32 {vr(S2,2)}, {vr(D[4],2)}, {vr(D[4],2)}, {vr(S2,2)}')
        a(f'v_add_f32 v{S1}, v{S1}, v{S1+1}\nv_add_f32 v{S2}, v{S2}, v{S2+1}')
        half_reduce([S1, S2], [S1 + 1, S2 + 1])
        a(f'''s_mov_b32 s82, {'0x3baaaaab' if x else '0x3c000000'}
v_mul_f32 v{S1+1}, s82, v{S1}
v_add_f32 v2, v{K}, v{S1+1}
v_fma_f32 v3, -v{S1+1}, v{S1}, v{S2}
s_mov_b32 exec_lo, 1
s_mov_b32 exec_hi, 1
ds_write_b64 v6, v[2:3] offset:{L_STAT}
s_mov_b64 exec, -1
s_waitcnt lgkmcnt(0)
s_barrier''')
        Q = RAW + 24
        a(f'''ds_read_b128 {vr(Q,4)}, v7 offset:{L_STAT}
ds_read_b128 {vr(Q+4,4)}, v7 offset:{L_STAT+16}
s_mov_b32 s72, 0x40400000
s_mov_b32 s73, 0x3de38e39
s_mov_b32 s74, 0x3fc00000
s_mov_b32 s75, 0x43000000
s_mov_b32 s82, 0x3ae38e39
s_waitcnt lgkmcnt(0)''')
        stamp('f_bar1')
        a(f'''v_add_f32 v2, v{Q}, v{Q+2}
v_add_f32 v{Q+1}, v{Q+1}, v{Q+3}
v_add_f32 v2, v2, v{Q+4}
v_add_f32 v{Q+5}, v{Q+5}, v{Q+7}
v_add_f32 v2, v2, v2
v_add_f32 v{Q+1}, v{Q+1}, v{Q+5}
v_fmac_f32 v2, s72, v{Q+6}
v_mul_f32 v2, s73, v2
v_sub_f32 v{Q}, v{Q}, v2
v_sub_f32 v{Q+2}, v{Q+2}, v2
v_sub_f32 v{Q+4}, v{Q+4}, v2
v_sub_f32 v{Q+6}, v{Q+6}, v2
v_mul_f32 v3, v{Q}, v{Q}
v_mul_f32 v{Q+6}, v{Q+6}, v{Q+6}
v_fmac_f32 v3, v{Q+2}, v{Q+2}
v_fmac_f32 v3, v{Q+4}, v{Q+4}
v_fmac_f32 v3, s74, v{Q+6}
v_fmac_f32 v{Q+1}, s75, v3
v_mul_f32 v3, s82, v{Q+1}''')
        ln_finish(2, 3, T3[0])
        for r in X: a(f'v_sub_f32 v{r}, v{r}, v2')
        rnd(X, T3)
        for r in X: a(f'v_mul_f32 v{r}, v{r}, v3')
        rnd(X, T3)
        for i, p in enumerate(prs): a(f'v_pk_mul_f32 {vr(p,2)}, {vr(p,2)}, {vr(PCr[2*i],2)}')
        rnd(X, T3)
        for i, p in enumerate(prs): a(f'v_pk_add_f32 {vr(p,2)}, {vr(p,2)}, {vr(PSr[2*i],2)}')
        a(f'''v_cvt_pk_bf16_f32 v2, v{X[0]}, v{X[1]}
v_cvt_pk_bf16_f32 v3, v{X[2]}, v{X[3]}
ds_write_b64 v8, v[2:3]''')
        if x:
            a(f'''v_cvt_pk_bf16_f32 v{K}, v{X[4]}, v{X[5]}
v_add_u32 v{K+1}, {L_AV + 1024*XW + 512}, v11
ds_write_b32 v{K+1}, v{K}
v_subrev_u32 v{K+1}, {L_AV + 1024*XW}, v9
v_lshrrev_b32 v{K+1}, 1, v{K+1}''')
        a(f'ds_read_b128 {vr(A,4)}, v9')
        if x: a(f'ds_read_b64 {vr(A2,2)}, v{K+1} offset:{L_AV + 1024*XW + 512}')
        a('s_waitcnt lgkmcnt(0)')
        for e in range(8): a(f'v_mfma_f32_16x16x32_bf16 {vr(RAW+4*e,4)}, {vr(A,4)}, {vr(TR+4*e,4)}, 0')
        if x:
            for e in range(8): a(f'v_mfma_f32_16x16x16_bf16 {vr(RAW+4*e,4)}, {vr(A2,2)}, {vr(TR2+2*e,2)}, {vr(RAW+4*e,4)}')
    f_phase1(False)
    a('s_branch L_f_j')
    a.label('L_f_x')
    f_phase1(True)
    a.label('L_f_j')
    narrow_write(10)
    MR2, AT2, TV, D2 = 150, 154, RAW, RAW + 8
    a(f'''s_lshl_b32 s72, s3, 8
s_add_u32 s72, s72, {L_TD}
v_bfe_u32 v4, v1, 3, 1
v_lshlrev_b32 v4, 7, v4
v_lshrrev_b32 v5, 4, v1
v_lshl_add_u32 v4, v5, 5, v4
v_add_u32 v4, s72, v4
v_and_b32 v5, 1, v1
v_lshlrev_b32 v5, 4, v5
v_mov_b32 v6, 0xffff
v_lshlrev_b32 v5, v5, v6
v_bfe_u32 v6, v1, 1, 2''')
    for r in range(4): a(f'v_cmp_eq_u32 vcc, {r}, v6\nv_cndmask_b32 v{MR2+r}, 0, v5, vcc')
    a(f'''v_lshrrev_b32 v7, 5, v1
v_mul_u32_u24 v7, 2304, v7
v_and_b32 v8, 15, v1
v_lshl_add_u32 v7, v8, 5, v7
v_bfe_u32 v8, v1, 4, 1
v_lshl_add_u32 v7, v8, 4, v7
s_mul_i32 s72, s101, 4608
s_add_u32 s72, s72, {WS_YP}
s_lshl_b32 s73, s3, 9
s_add_u32 s73, s73, s72
s_waitcnt lgkmcnt(0)
s_barrier''')
    stamp('f_bar2')
    narrow_sum(3, 11)
    rnd([3], 2)
    a(f'v_add_f32 v3, v3, v{B1R}')
    rnd([3], 2)
    a(f'''v_max_f32 v3, 0, v3
v_mul_f32 v3, v3, v3
v_cvt_pk_bf16_f32 v3, v3, v3
ds_write_b32 v12, v3
ds_read_b128 {vr(TV,4)}, v4
ds_read_b128 {vr(TV+4,4)}, v4 offset:16
s_cmp_eq_u32 s3, 2
s_cbranch_scc1 L_f2_x''')
    def f2(extra):
        for jj in range(8):
            at = AT2 + 4 * (jj % 2)
            if jj == 0: a('s_waitcnt lgkmcnt(1) vmcnt(0)')
            if jj == 4: a('s_waitcnt lgkmcnt(0)')
            if jj == 0:
                for r in range(4): a(f'v_and_b32 v{at+r}, v{TV}, v{MR2+r}')
            if jj + 1 < 8:
                if jj + 1 == 4: a('s_waitcnt lgkmcnt(0)')
                for r in range(4): a(f'v_and_b32 v{AT2+4*((jj+1)%2)+r}, v{TV+jj+1}, v{MR2+r}')
            a(f'v_mfma_f32_16x16x32_bf16 {vr(D2,4)}, {vr(at,4)}, {vr(W2+4*jj,4)}, ' + ('0' if jj == 0 else vr(D2, 4)))
            if extra: a(f'v_mfma_f32_16x16x32_bf16 {vr(D2+4,4)}, {vr(at,4)}, {vr(W2X+4*jj,4)}, ' + ('0' if jj == 0 else vr(D2 + 4, 4)))
        a(f'''v_lshrrev_b32 v2, 3, v1
v_mul_u32_u24 v2, 4608, v2
v_and_b32 v3, 7, v1
v_lshl_add_u32 v2, v3, 4, v2
s_lshl_b32 s74, s101, 7''')
        a(f'buffer_store_dwordx4 {vr(D2,4)}, v7, s[12:15], s73 offen sc1')
        if extra:
            a(f'''s_mov_b32 exec_lo, 0x00ff00ff
s_mov_b32 exec_hi, 0x00ff00ff
buffer_store_dwordx4 {vr(D2+4,4)}, v7, s[12:15], s72 offen offset:2048 sc1
s_mov_b64 exec, -1''')
    f2(False)
    a('s_branch L_f2_d')
    a.label('L_f2_x')
    f2(True)
    a.label('L_f2_d')
    stamp('t_pub')
    a(f'''s_cmp_ge_u32 s101, 36
s_cbranch_scc1 L_fin_end
s_mul_i32 s73, s3, {8*4608}
s_add_u32 s73, s73, s74
s_add_u32 s4, s73, {WS_YP}
s_add_u32 s5, s4, {32*4608}
s_add_u32 s6, s5, {32*4608}
s_add_u32 s7, s6, {32*4608}
s_add_u32 s8, s7, {32*4608}
v_lshrrev_b32 v8, 4, v1
v_lshlrev_b32 v8, 7, v8
v_lshl_add_u32 v8, v3, 4, v8
s_lshl_b32 s75, s3, 9
v_add_u32 v8, s75, v8
v_and_b32 v9, 31, v1
v_lshlrev_b32 v10, 2, v9
v_add_u32 v11, s74, v10
v_lshlrev_b32 v9, 1, v9
s_lshr_b32 s74, s74, 1
ds_read_b32 v12, v11 offset:{L_X1}
s_sleep {cfg.s5first}
s_cmp_lt_u32 s3, 2
s_cbranch_scc1 L_fin_x''')
    FA = RAW + 16
    def fin_poll(m):
        L = a.newlabel('FP'); E = a.newlabel('FPE')
        n = cfg.s5sets
        sets = [80 + 20 * i for i in range(n)]
        def ld(r):
            for k in range(m): a(f'buffer_load_dwordx4 {vr(r+4*k,4)}, v2, s[12:15], s{4+k} offen sc1')
        a('s_mov_b32 s80, 0')
        for i, r in enumerate(sets):
            ld(r)
            if i + 1 < n: a(f's_sleep {cfg.s5gap}')
        a.label(L)
        for i, r in enumerate(sets):
            for k in range(1, m):
                a(f's_waitcnt vmcnt({(n-1)*m + m - 1 - k})')
                for h in (0, 2): a(f'v_pk_add_f32 {vr(FA+h,2)}, {vr((r if k == 1 else FA)+h,2)}, {vr(r+4*k+h,2)}')
            a(f'''v_cmp_u_f32 s[66:67], v{FA}, v{FA+1}
v_cmp_u_f32 vcc, v{FA+2}, v{FA+3}
s_or_b64 s[66:67], s[66:67], vcc
s_cbranch_scc0 {E}''')
            if n == 1: a(f's_sleep {cfg.s5sleep}')
            ld(r)
        a(f'''s_add_u32 s80, s80, 1
s_cmp_gt_u32 s80, {SPIN_LIMIT}
s_cbranch_scc0 {L}''')
        a.label(E)
    fin_poll(4)
    a('s_branch L_fin_d')
    a.label('L_fin_x')
    fin_poll(5)
    a.label('L_fin_d')
    stamp('f_s5')
    for r in range(4): a(f'v_add_f32_dpp v{FA+r}, v{FA+r}, v{FA+r} row_ror:8 {DPP}')
    a(f'''s_mov_b32 exec_lo, 0x00ff00ff
s_mov_b32 exec_hi, 0x00ff00ff
ds_write_b128 v8, {vr(FA,4)} offset:{L_RED}
s_mov_b64 exec, -1''')
    lds_last(L_CNTF, 4, 0, 2, 'L_fin_end')
    for p in range(16): a(f'ds_read_b32 v{TR+p}, v10 offset:{L_RED+128*p}')
    for p in range(0, 16, 4):
        a(f's_waitcnt lgkmcnt({12-p})')
        a(f'v_pk_add_f32 {vr(TR+p,2)}, {vr(TR+p,2)}, {vr(TR+p+2,2)}')
    a(f'''v_pk_add_f32 {vr(TR,2)}, {vr(TR,2)}, {vr(TR+4,2)}
v_pk_add_f32 {vr(TR+8,2)}, {vr(TR+8,2)}, {vr(TR+12,2)}
v_pk_add_f32 {vr(TR,2)}, {vr(TR,2)}, {vr(TR+8,2)}
v_add_f32 v{TR}, v{TR}, v{TR+1}''')
    rnd([TR], 2)
    a(f'v_add_f32 v{TR}, v{TR}, v{B2R}')
    rnd([TR], 2)
    a(f'v_mul_f32 v{TR}, v{TR}, v{GBR}')
    rnd([TR], 2)
    a(f'''v_add_f32 v{TR}, v{TR}, v12
v_cvt_pk_bf16_f32 v6, v{TR}, v{TR}
s_mov_b32 exec_hi, 0
buffer_store_short v6, v9, s[28:31], s74 offen
s_mov_b64 exec, -1
s_cmp_lg_u32 s101, 0
s_cbranch_scc1 L_fin_end
v_mov_b32 v8, s32
v_mov_b32 v9, s33
s_mov_b32 s70, {WS_EP}
s_mov_b64 exec, 1
buffer_store_dwordx2 v[8:9], v0, s[12:15], s70 offen sc1
s_mov_b64 exec, -1''')
    a.label('L_fin_end')
    chain_end()

    a.label('L_t_o')
    RA, RB, TA, TB = 16, 80, 48, 112
    srd(a, 20, PWO, SZ['wo'])
    a(f'''s_mov_b32 s71, s101
s_mul_i32 s76, s71, 57
s_lshr_b32 s76, s76, 9
s_mul_i32 s73, s76, 9
s_sub_u32 s77, s71, s73
v_lshrrev_b32 v2, 3, v1
v_mul_u32_u24 v2, {8*1152}, v2
v_and_b32 v3, 7, v1
v_lshl_add_u32 v2, v3, 4, v2
s_lshl_b32 s72, s76, 9
s_lshl_b32 s73, s3, 7
s_add_u32 s72, s72, s73
s_mul_i32 s72, s72, 1152
s_lshl_b32 s73, s77, 7
s_add_u32 s72, s72, s73''')
    if cfg.touch:
        a(f'''s_mov_b64 exec, 1
buffer_load_dword v{RA}, v0, s[20:23], s72 offen
s_mov_b64 exec, -1''')
    a(f'''v_lshrrev_b32 v12, 5, v1
v_lshlrev_b32 v12, 12, v12
v_and_b32 v3, 7, v1
v_lshl_add_u32 v12, v3, 5, v12
s_lshl_b32 s68, s76, 1
s_lshr_b32 s71, s3, 1
s_add_u32 s68, s68, s71
s_lshl_b32 s68, s68, 8
s_and_b32 s71, s3, 1
s_lshl_b32 s71, s71, 4
s_add_u32 s68, s68, s71
s_add_u32 s68, s68, {WS_ML}
s_nop 0''')
    lds_spin({'A': L_CNTA, 'V': L_CNTV, 'K': L_CNTK}[cfg.wo_at], 9 if cfg.wo_at == 'A' else 8, 0, 3, sleep=2)
    ML = 160
    a(f'buffer_load_dwordx4 {vr(ML,4)}, v12, s[12:15], s68 offen sc1')
    for blk, R in ((0, RA), (1, RB)):
        for j in range(8):
            o = (64 * blk + j) * 1152
            a(f's_add_u32 s73, s72, {o & ~0xfff}')
            a(f'buffer_load_dwordx4 {vr(R+4*j,4)}, v2, s[20:23], s73 offen offset:{o & 0xfff}{NT}')
    a(f'''v_lshrrev_b32 v4, 5, v1
v_lshlrev_b32 v4, 17, v4
v_and_b32 v3, 31, v1
v_lshl_add_u32 v4, v3, 4, v4
s_lshl_b32 s72, s76, 1
s_lshr_b32 s73, s3, 1
s_add_u32 s72, s72, s73
s_lshl_b32 s72, s72, 13
s_and_b32 s73, s3, 1
s_lshl_b32 s73, s73, 9
s_add_u32 s72, s72, s73
s_add_u32 s72, s72, {WS_OP}
s_add_u32 s73, s72, 4096
s_lshl_b32 s74, s3, 10
s_add_u32 s75, s74, {L_AV}
v_lshlrev_b32 v8, 3, v1
v_add_u32 v5, s75, v8
v_lshrrev_b32 v6, 4, v1
v_bfe_u32 v3, v1, 2, 1
v_lshl_add_u32 v6, v6, 1, v3
v_and_b32 v3, 1, v1
v_lshlrev_b32 v3, 8, v3
v_lshl_add_u32 v6, v6, 4, v3
v_add_u32 v6, s75, v6
v_and_b32 v7, 7, v1
v_lshlrev_b32 v7, 6, v7
v_lshrrev_b32 v3, 4, v1
v_lshl_add_u32 v7, v3, 9, v7
v_add_u32 v7, s74, v7
v_lshlrev_b32 v9, 2, v1
s_mul_i32 s74, s76, 4608
s_lshl_b32 s75, s77, 8
s_add_u32 s74, s74, s75
s_add_u32 s74, s74, {WS_X1P}''')
    lds_spin(L_ARR, 1, 0, 3)
    a('s_waitcnt vmcnt(8)')
    transpose8(RA, TA)
    a('s_waitcnt vmcnt(0)')
    stamp('t_w')
    transpose8(RB, TB)
    FS = 152
    a(f'v_cmp_ne_u64 vcc, s[32:33], {vr(ML+2,2)}\ns_cbranch_vccz L_o_ml')
    tpoll([(ML, 12, 's68', 0)], sleep=4)
    a.label('L_o_ml')
    a('s_mov_b32 s82, 0x3fb8aa3b')
    a(f'''v_max_f32_dpp v10, v{ML}, v{ML} quad_perm:[1,0,3,2] {DPP}
v_max_f32_dpp v10, v10, v10 quad_perm:[2,3,0,1] {DPP}
v_max_f32_dpp v10, v10, v10 row_half_mirror {DPP}
v_sub_f32 v10, v{ML}, v10
v_mul_f32 v10, s82, v10
v_exp_f32 v10, v10
v_mul_f32 v11, v10, v{ML+1}
v_add_f32_dpp v11, v11, v11 quad_perm:[1,0,3,2] {DPP}
v_add_f32_dpp v11, v11, v11 quad_perm:[2,3,0,1] {DPP}
v_add_f32_dpp v11, v11, v11 row_half_mirror {DPP}
v_rcp_f32 v11, v11
v_mul_f32 v10, v10, v11''')
    for sp in range(8): a(f'v_mov_b32_dpp v{FS+sp}, v10 row_newbcast:{sp} {DPP}')
    stamp('f_bar1')
    lds_spin(L_PUB, 1, 0, 3, sleep=2)
    pend_poll([(RA + 4 * sp, 4, 4, 's72' if sp < 4 else 's73', (sp % 4) * 1024) for sp in range(8)], cfg.s3sleep)
    for sp in range(8):
        sel = 'op_sel_hi:[1,0,1]' if sp % 2 == 0 else 'op_sel:[0,1,0] op_sel_hi:[1,1,1]'
        fp = vr(FS + sp - sp % 2, 2)
        acc = RA + 4 * (sp % 2)
        for h in (0, 2):
            if sp < 2: a(f'v_pk_mul_f32 {vr(RA+4*sp+h,2)}, {vr(RA+4*sp+h,2)}, {fp} ' + ('op_sel_hi:[1,0]' if sp % 2 == 0 else 'op_sel:[0,1] op_sel_hi:[1,1]'))
            else: a(f'v_pk_fma_f32 {vr(acc+h,2)}, {vr(RA+4*sp+h,2)}, {fp}, {vr(acc+h,2)} {sel}')
    a(f'''v_pk_add_f32 {vr(RA,2)}, {vr(RA,2)}, {vr(RA+4,2)}
v_pk_add_f32 {vr(RA+2,2)}, {vr(RA+2,2)}, {vr(RA+6,2)}''')
    stamp('t_poll')
    a(f'''v_cvt_pk_bf16_f32 v2, v{RA}, v{RA+1}
v_cvt_pk_bf16_f32 v3, v{RA+2}, v{RA+3}
ds_write_b64 v5, v[2:3]
ds_read_b128 {vr(A,4)}, v6
ds_read_b128 {vr(A+4,4)}, v6 offset:128
s_waitcnt lgkmcnt(1)''')
    for e in range(8): a(f'v_mfma_f32_16x16x32_bf16 {vr(RB+4*e,4)}, {vr(A,4)}, {vr(TA+4*e,4)}, 0')
    a('s_waitcnt lgkmcnt(0)')
    for e in range(8): a(f'v_mfma_f32_16x16x32_bf16 {vr(RB+4*e,4)}, {vr(A+4,4)}, {vr(TB+4*e,4)}, {vr(RB+4*e,4)}')
    a('s_mov_b32 exec_lo, 0xff0000ff\ns_mov_b32 exec_hi, 0')
    for e in range(8): a(f'ds_write_b64 v7, {vr(RB+4*e,2)} offset:{L_RED+8*e}')
    a('s_mov_b64 exec, -1')
    lds_last(L_CNTO, 4, 0, 2, 'L_o_end')
    for p in range(8): a(f'ds_read_b64 {vr(TA+2*p,2)}, v8 offset:{L_RED+512*p}')
    for p in range(0, 8, 2):
        a(f's_waitcnt lgkmcnt({6-p})')
        a(f'v_pk_add_f32 {vr(TA+2*p,2)}, {vr(TA+2*p,2)}, {vr(TA+2*p+2,2)}')
    a(f'''v_pk_add_f32 {vr(TA,2)}, {vr(TA,2)}, {vr(TA+4,2)}
v_pk_add_f32 {vr(TA+8,2)}, {vr(TA+8,2)}, {vr(TA+12,2)}
v_pk_add_f32 {vr(TA,2)}, {vr(TA,2)}, {vr(TA+8,2)}
buffer_store_dword v{TA}, v9, s[12:15], s74 offen sc1
buffer_store_dword v{TA+1}, v9, s[12:15], s74 offen offset:2304 sc1''')
    stamp('t_pub')
    if cfg.stamps and not cfg.allw:
        a(f'''s_memrealtime s[26:27]
s_waitcnt lgkmcnt(0)
v_mov_b32 v4, s26
s_lshl_b32 s78, s2, 6
s_add_u32 s78, s78, {WS_ST + 0x10004}
v_mov_b32 v5, s78
s_mov_b64 exec, 1
buffer_store_dword v4, v5, s[12:15], 0 offen
s_mov_b64 exec, -1''')
    a.label('L_o_end')
    a.label('L_t_none')
    chain_end()

    a.label('L_stream')
    SL = lambda k: 26 + 4 * k
    NL = 16
    NOPT = NMAX - NCOM
    VD = lambda p: SL(p - NL)
    VR = lambda p: SL(19 + p % 12)
    MR, AT, OA = SL(31), SL(32), SL(34)
    OS = 16
    a(f"""s_setprio 1
s_sub_u32 s3, s3, 4
v_and_b32 v2, 3, v1
v_lshlrev_b32 v2, 4, v2
v_bfe_u32 v3, v1, 2, 2
v_lshl_add_u32 v2, v3, 8, v2
v_lshrrev_b32 v3, 4, v1
v_lshl_add_u32 v2, v3, 6, v2
v_lshlrev_b32 v3, 4, v1
v_and_b32 v18, 3, v1
v_lshlrev_b32 v18, 4, v18
v_bfe_u32 v17, v1, 2, 1
v_lshl_add_u32 v18, v17, 8, v18
v_lshrrev_b32 v17, 4, v1
v_lshl_add_u32 v18, v17, 6, v18
s_and_b32 s34, s2, 31
s_lshl_b32 s70, s34, 21
s_lshl_b32 s34, s34, 3
s_lshr_b32 s35, s2, 5
s_add_u32 s34, s34, s35
s_lshl_b32 s34, s34, 10
s_add_u32 s34, s34, {WS_OP}
s_lshl_b32 s35, s3, 14
s_add_u32 s35, s35, {L_V}
s_waitcnt lgkmcnt(0)
s_and_b32 s71, s100, 0xff
s_lshl_b32 s71, s71, 13
s_add_u32 s70, s70, s71
s_bfe_u32 s25, s100, 0x40008
s_lshl_b32 s71, s3, 10
s_add_u32 s70, s70, s71""")
    srd(a, 4, PK, SZ['k']); srd(a, 8, PV, SZ['v']); srd(a, 12, PWS, SZ['ws'])
    def off(p):
        if p >= NCOM: return f's{OS+p-NCOM}'
        a(f's_add_u32 s71, s70, {p*8192}')
        return 's71'
    def dep(d=None):
        d = cfg.depth if d is None else d
        if d: a(f's_waitcnt vmcnt({d-1})')
    def kload(p): a(f'buffer_load_dwordx4 {vr(SL(p),4)}, v2, s[4:7], {off(p)} offen{NT}')
    def vload(p): a(f'buffer_load_dwordx4 {vr(VD(p),4)}, v3, s[8:11], {off(p)} offen{NT}')
    def vdma(p):
        a(f's_add_u32 m0, s35, {p * 1024}')
        a(f'buffer_load_dwordx4 v3, s[8:11], {off(p)} offen{NT} lds')
    posm = [0x11111111, 0x22222222, 0x44444444, 0x88888888]
    def opt_setup():
        for o in range(NOPT):
            a(f"""s_add_u32 s{OS+o}, s70, {(NCOM+o)*8192}
s_cmp_gt_u32 s25, {o}
s_cselect_b32 s{OS+o}, s{OS+o}, 0x80000000
s_cselect_b32 s{40+2*o}, {posm[(NCOM+o)%4]}, 0
s_mov_b32 s{41+2*o}, s{40+2*o}""")
        for i, m in enumerate(posm): a(f's_mov_b32 s{58+2*i}, {m}\ns_mov_b32 s{59+2*i}, {m}')
        for r in (14, 15, 16): a(f'v_mov_b32 v{r}, 0xff800000')
    if cfg.crit_d:
        a('s_bitcmp1_b32 s100, 30\ns_cbranch_scc1 L_kslow')
    for p in range(NMAX):
        if p == 4: opt_setup()
        a.label(f'L_kf{p}')
        if p >= cfg.depth: dep()
        kload(p)
    a.label(f'L_kf{NMAX}')
    lds_inc(L_CNTK, 0, 17)
    stamp('s_issued')
    a('s_setprio 0')
    if cfg.kgate: lds_spin(L_CNTK, 8, 0, 17, sleep=4)
    NG = NL // 4
    for g in range(NG):
        if g < cfg.pre_g:
            for p in range(4 * g, 4 + 4 * g): vdma(p)
            continue
        a(f"""ds_read_b32 v17, v0 offset:{L_QF}
s_waitcnt lgkmcnt(0)
v_readfirstlane_b32 s81, v17
s_mov_b32 s79, {g}
s_cmp_lg_u32 s81, 0
s_cbranch_scc1 L_qk_w{g}""")
        for p in range(4 * g, 4 + 4 * g): dep(); vdma(p)
    lds_spin(L_QF, 1, 0, 17)
    a(f's_mov_b32 s79, {NG}\ns_waitcnt vmcnt({NL})\ns_branch L_qk')
    for g in range(cfg.pre_g, NG):
        a.label(f'L_qk_w{g}')
        a(f's_waitcnt vmcnt({4 * g})')
        if g + 1 < NG: a('s_branch L_qk')
    a.label('L_qk')
    a(f's_setprio 1\nds_read_b128 v[4:7], v18 offset:{L_Q}\ns_waitcnt lgkmcnt(0)')
    stamp('s_q')
    def qk_post(p):
        D = 18 + 4 * (p % 2); i, c = p // 4, p % 4
        direct = c == 0 and i < NCOM // 4
        T = 8 + i if direct else 1
        a(f'v_mov_b32_dpp v{T}, v{D} quad_perm:[0,0,0,0] {DPP}')
        for t in (1, 2, 3): a(f'v_add_f32_dpp v{T}, v{D+t}, v{T} quad_perm:[{t},{t},{t},{t}] {DPP}')
        if not direct:
            m = f's[{58+2*c}:{59+2*c}]' if p < NCOM else f's[{40+2*(p-NCOM)}:{41+2*(p-NCOM)}]'
            a(f'v_cndmask_b32 v{8+i}, v{8+i}, v1, {m}')
    a('v_mov_b32 v0, v1')
    for p in range(NMAX):
        a(f'v_mfma_f32_16x16x32_bf16 {vr(18+4*(p%2),4)}, {vr(SL(p),4)}, v[4:7], 0')
        if p: qk_post(p - 1)
    qk_post(NMAX - 1)
    S = list(range(8, 17))
    if not cfg.noround: rnd(S, [18, 19, 20, 21, 22])
    a('s_mov_b32 s82, 0x3db504f3')
    for r in S: a(f'v_mul_f32 v{r}, s82, v{r}')
    if not cfg.noround: rnd(S, [18, 19, 20, 21, 22])
    a(f"""v_max3_f32 v18, v8, v9, v10
v_max3_f32 v19, v11, v12, v13
v_max3_f32 v20, v14, v15, v16
v_max3_f32 v18, v18, v19, v20
v_max_f32_dpp v18, v18, v18 quad_perm:[1,0,3,2] {DPP}
v_max_f32_dpp v18, v18, v18 quad_perm:[2,3,0,1] {DPP}
v_mov_b32 v19, v18
v_permlane16_swap_b32 v18, v19
v_max_f32 v18, v18, v19
v_mov_b32 v19, v18
v_permlane32_swap_b32 v18, v19
v_max_f32 v18, v18, v19
s_mov_b32 s83, 0x3fb8aa3b
v_lshlrev_b32 v24, 3, v0
s_lshl_b32 s81, s3, 2
v_add_u32 v24, s81, v24
v_mov_b32 v1, 0
s_mov_b64 exec, 0x11
ds_write_b32 v24, v18 offset:{L_MW}
s_mov_b64 exec, -1""")
    lds_inc(L_CNTA, 1, 17)
    stamp('s_qk')
    a(f"""v_and_b32 v18, 3, v0
v_bfe_u32 v19, v0, 3, 1
v_lshl_add_u32 v18, v19, 2, v18
v_and_b32 v19, 1, v18
v_lshlrev_b32 v19, 4, v19
v_mov_b32 v17, 0xffff
v_lshlrev_b32 v19, v19, v17
v_lshrrev_b32 v18, 1, v18""")
    for r in range(4):
        a(f'v_cmp_eq_u32 vcc, {r}, v18\nv_cndmask_b32 v{MR+r}, 0, v19, vcc')
    a(f"""v_bfe_u32 v18, v0, 2, 1
v_lshlrev_b32 v18, 5, v18
v_and_b32 v20, 15, v0
v_lshlrev_b32 v20, 5, v20
v_bfe_u32 v19, v0, 4, 1
v_lshl_add_u32 v20, v19, 9, v20
v_lshrrev_b32 v19, 5, v0
v_lshl_add_u32 v20, v19, 4, v20
s_lshl_b32 s81, s3, 10
v_add_u32 v20, s81, v20
v_add_u32 v21, s35, v3""")
    a('s_setprio 0')
    for g in range(cfg.pre_g, NG):
        a(f's_cmp_gt_u32 s79, {g}\ns_cbranch_scc1 L_dma{g}')
        for p in range(4 * g, 4 + 4 * g): dep(cfg.vdepth); vdma(p)
        a.label(f'L_dma{g}')
    vorder = list(range(NCOM, NMAX)) + list(range(NL, NCOM))
    for p in vorder[:cfg.vfirst]: dep(cfg.vdepth); vload(p)
    lds_spin(L_CNTA, 9, 1, 17)
    a(f"""ds_read_b128 {vr(AT,4)}, v18 offset:{L_MW}
ds_read_b128 {vr(AT+4,4)}, v18 offset:{L_MW+16}
s_waitcnt lgkmcnt(0)
v_max3_f32 v18, v{AT}, v{AT+1}, v{AT+2}
v_max3_f32 v19, v{AT+3}, v{AT+4}, v{AT+5}
v_max3_f32 v18, v18, v{AT+6}, v{AT+7}
v_max_f32 v18, v18, v19""")
    stamp('s_ml')
    for r in S: a(f'v_sub_f32 v{r}, v{r}, v18')
    for r in S: a(f'v_mul_f32 v{r}, s83, v{r}')
    for r in S: a(f'v_exp_f32 v{r}, v{r}')
    a(f"""v_pk_add_f32 v[18:19], v[8:9], v[10:11]
v_pk_add_f32 v[22:23], v[12:13], v[14:15]
v_pk_add_f32 v[18:19], v[18:19], v[22:23]
v_add_f32 v19, v18, v19
v_add_f32 v19, v19, v16""")
    for r in S: a(f'v_cvt_pk_bf16_f32 v{r}, v{r}, v{r}')
    a(f"""v_add_f32_dpp v19, v19, v19 quad_perm:[1,0,3,2] {DPP}
v_add_f32_dpp v19, v19, v19 quad_perm:[2,3,0,1] {DPP}
v_mov_b32 v18, v19
v_permlane16_swap_b32 v19, v18
v_add_f32 v19, v19, v18
v_mov_b32 v18, v19
v_permlane32_swap_b32 v19, v18
v_add_f32 v19, v19, v18
s_mov_b64 exec, 0x11
ds_write_b32 v24, v19 offset:{L_LW}
s_mov_b64 exec, -1""")
    lds_inc(L_CNTL, 1, 17)
    for p in vorder[cfg.vfirst:]: dep(cfg.vdepth); vload(p)
    lds_inc(L_CNTV, 1, 17)
    stamp('s_vissued')
    a(f's_waitcnt vmcnt({NMAX - NL})')
    for p in range(12): a(f'ds_read_b128 {vr(VR(p),4)}, v21 offset:{p*1024}')
    order = list(range(NL)) + vorder
    def abuild(k):
        p = order[k]; i, c = p // 4, p % 4
        for r in range(4):
            a(f'v_and_b32_dpp v{AT+4*(k%2)+r}, v{8+i}, v{MR+r} quad_perm:[{c},{c},{c},{c}] {DPP}')
    abuild(0)
    for k, p in enumerate(order):
        if k + 1 < NMAX: abuild(k + 1)
        if p >= NL: a(f's_waitcnt vmcnt({NMAX - 1 - k})')
        elif p < 4: a(f's_waitcnt lgkmcnt({11 - p + p})' if False else f's_waitcnt lgkmcnt({11})' if False else f's_waitcnt lgkmcnt({11 - p + min(p, 4)})')
        elif p < 12: a(f's_waitcnt lgkmcnt({15 - p})')
        else: a(f's_waitcnt lgkmcnt({15 - p})')
        a(f'v_mfma_f32_16x16x32_bf16 {vr(OA,4)}, {vr(AT+4*(k%2),4)}, {vr(VR(p) if p < NL else VD(p),4)}, ' + ('0' if k == 0 else vr(OA, 4)))
        if p < 4: a(f'ds_read_b128 {vr(VR(12+p),4)}, v21 offset:{(12+p)*1024}')
    a(f'ds_write_b128 v20, {vr(OA,4)} offset:{L_OPL}')
    stamp('s_end')
    lds_last(L_CNTB, 8, 1, 17, 'L_s_end')
    R0 = SL(0)
    for w in range(8): a(f'ds_read_b128 {vr(R0+4*w,4)}, v3 offset:{L_OPL+1024*w}')
    for w in range(0, 8, 2):
        a(f's_waitcnt lgkmcnt({6-w})')
        for h in (0, 2): a(f'v_pk_add_f32 {vr(R0+4*w+h,2)}, {vr(R0+4*w+h,2)}, {vr(R0+4+4*w+h,2)}')
    for st in (2, 4):
        for w in range(0, 8, 2 * st):
            for h in (0, 2): a(f'v_pk_add_f32 {vr(R0+4*w+h,2)}, {vr(R0+4*w+h,2)}, {vr(R0+4*(w+st)+h,2)}')
    a(f'buffer_store_dwordx4 {vr(R0,4)}, v3, s[12:15], s34 offen sc1')
    lds_inc(L_PUB, 1, 17)
    if cfg.stamps and not cfg.allw:
        a(f'''s_memrealtime s[26:27]
s_waitcnt lgkmcnt(0)
v_mov_b32 v4, s26
s_lshl_b32 s78, s2, 6
s_add_u32 s78, s78, {WS_ST + 0x10000}
v_mov_b32 v5, s78
s_mov_b64 exec, 1
buffer_store_dword v4, v5, s[12:15], 0 offen
s_mov_b64 exec, -1''')
    a.label('L_s_end')
    stamp('s_pub')
    if cfg.allw:
        i, j = cfg.allw
        a(f'''s_waitcnt lgkmcnt(0)
v_mov_b32 v2, s{84+2*i}
v_mov_b32 v3, s{84+2*j}
s_lshl_b32 s78, s2, 6
s_lshl_b32 s79, s3, 3
s_add_u32 s78, s78, s79
s_add_u32 s78, s78, {WS_ST}
v_mov_b32 v10, s78
s_mov_b64 exec, 1
buffer_store_dwordx2 v[2:3], v10, s[12:15], 0 offen''')
    elif cfg.stamps:
        a(f's_cmp_lg_u32 s3, {cfg.stwave}\ns_cbranch_scc1 L_end')
        store_stamps(1)
    if cfg.crit_d:
        a('s_endpgm')
        a.label('L_kslow')
        opt_setup()
        for p in range(NMAX):
            if p >= cfg.crit_d: a(f's_waitcnt vmcnt({cfg.crit_d-1})')
            if p >= 4:
                a(f'''ds_read_b32 v17, v0 offset:{L_REL}
s_waitcnt lgkmcnt(0)
v_readfirstlane_b32 s81, v17
s_cmp_lg_u32 s81, 0
s_cbranch_scc1 L_kf{p}''')
            kload(p)
        a(f's_branch L_kf{NMAX}')
    a.label('L_end')
    a('s_endpgm')
    a.items.append(('c', '.p2align 2'))
    a.label('L_table')
    tab = role_table(cfg)
    for i in range(0, 256, 8): a.items.append(('c', '.long ' + ', '.join(f'0x{t:08x}' for t in tab[i:i+8])))
    open(fname, 'w').write(build_file([(kn, a, 168, 102, None)], [(None, 256, 768, LDS_BYTES)]))

SS = dict(s_issued=1, s_q=2, s_qk=3, s_vissued=4, s_ml=5, s_end=6, s_pub=7)
HEAD = dict(start=0, c_karg=1, c_bar=2, c_w=3, c_mod=4, c_head=5, c_q=6, c_ml=7, **SS)
TAIL = dict(start=0, t_w=1, t_poll=2, f_bar1=3, f_bar2=4, t_pub=5, f_s5=6, c_end=7, **SS)
def mk(fname, **kw):
    c = Cfg()
    for k, v in kw.items(): setattr(c, k, v)
    gen(c, fname)
if __name__ == '__main__':
    PF = 27136
    mk('f26.s', codepf=PF)
    mk('f26_b.s', codepf=PF, w2_dyn=False)
    mk('f26_c.s', codepf=PF, vfirst=3)
    mk('f26_d.s', codepf=PF, pace_n=5)
    mk('f26_e.s', codepf=PF, pace_n=1)
    for c in (0, 3): mk(f'f26_stt{c}.s', stamps=TAIL, ctwave=c, stwave=7, codepf=PF)
```

```python
import gen26
PF = 27136
gen26.mk('g27_nt.s', codepf=PF, w2_dyn=False)
gen26.mk('g27_no.s', codepf=PF, w2_dyn=False, nt=False)
s = open('g27_nt.s').read()
open('g27_sc1nt.s','w').write(s.replace(' nt', ' sc1 nt'))
open('g27_sc0nt.s','w').write(s.replace(' nt', ' sc0 nt'))
open('g27_sc1.s','w').write(s.replace(' nt', ' sc1'))
open('g27_sc01.s','w').write(s.replace(' nt', ' sc0 sc1'))
```

```python
import re
NAME = 'adaLN_cond__gqa_block_cached__dense_activation_squared_relu__decode'
HEADER = open('cdna_kernels/' + NAME + '.s.ref').read().split('; Override launch')[0]

KA = dict(x=0, k=8, v=16, wq=24, wo=32, bx=40, w1=48, b1=56, w2=64, b2=72, c=80, wmod=88, out=96, dbg=104, ws=112)
SZ = dict(x=2304, k=67108864, v=67108864, wq=576*4096*2, wo=4096*576*2, w1=576*4608*2, b1=4608*2, w2=4608*576*2,
          b2=1152, c=2304, wmod=576*3456*2, out=2304, dbg=256, ws=268435456)

_reg_re = re.compile(r'^-?\|?(?:abs\()?([vsa])(?:(\d+)|\[(\d+):(\d+)\])\)?\|?$')
def regs_of(op):
    op = op.strip()
    if op == 'vcc': return [('s', 106), ('s', 107)]
    if op == 'exec': return [('s', 126), ('s', 127)]
    if op == 'm0': return [('s', 124)]
    m = _reg_re.match(op)
    if not m: return []
    k = m.group(1)
    if m.group(2) is not None: return [(k, int(m.group(2)))]
    return [(k, i) for i in range(int(m.group(3)), int(m.group(4)) + 1)]

TRANS = ('v_exp_f32', 'v_log_f32', 'v_rcp_f32', 'v_rsq_f32', 'v_sqrt_f32', 'v_sin_f32', 'v_cos_f32')

class Ins:
    def __init__(self, text):
        self.text = text
        t = text.split(';')[0].strip()
        parts = t.split(None, 1)
        self.mn = parts[0]
        rest = parts[1] if len(parts) > 1 else ''
        ops = []; cur = ''; depth = 0
        for ch in rest:
            if ch == '[': depth += 1
            if ch == ']': depth -= 1
            if ch == ',' and depth == 0: ops.append(cur.strip()); cur = ''
            else: cur += ch
        if cur.strip(): ops.append(cur.strip())
        self.mods = ''
        if ops:
            lp = ops[-1].split(None, 1)
            ops[-1] = lp[0]
            self.mods = lp[1] if len(lp) > 1 else ''
        self.ops = ops
        mn = self.mn
        self.kind = 'other'
        self.wr = []; self.rd = []
        R = lambda i: regs_of(ops[i]) if i < len(ops) else []
        allr = lambda k: [r for i in range(k, len(ops)) for r in R(i)]
        self.dpp = mn.endswith('_dpp')
        self.states = 1
        if mn == 's_nop':
            self.states = int(ops[0], 0) + 1; self.kind = 'nop'
        elif mn.startswith('v_mfma'):
            self.kind = 'mfma'; self.wr = R(0); self.rd = allr(1); self.ab = R(1) + R(2); self.c = R(3)
        elif mn.startswith('v_'):
            self.kind = 'valu'
            if mn.startswith('v_permlane') and 'swap' in mn:
                self.wr = R(0) + R(1); self.rd = R(0) + R(1)
            elif mn.startswith('v_add_co') or mn.startswith('v_sub_co') or mn.startswith('v_addc_co') or mn.startswith('v_div_scale'):
                self.wr = R(0) + R(1); self.rd = allr(2)
            else:
                self.wr = R(0); self.rd = allr(1)
                if mn.startswith('v_fmac') or mn.startswith('v_writelane') or self.dpp: self.rd = self.rd + R(0)
            if mn.startswith('v_cmpx'): self.wr = self.wr + regs_of('exec')
        elif mn.startswith('buffer_') or mn.startswith('global_'):
            self.kind = 'vmem'
            if mn.startswith('buffer_load'):
                if ' lds' in (' ' + self.mods): self.rd = allr(0)
                else: self.wr = R(0); self.rd = allr(1)
            elif mn.startswith('global_load'):
                self.wr = R(0); self.rd = allr(1)
            else:
                self.rd = allr(0)
                self.store_data = R(0) if mn.startswith('buffer_') else R(1)
        elif mn.startswith('ds_'):
            self.kind = 'ds'
            if mn.startswith('ds_read') or '_rtn' in mn or mn.startswith('ds_bpermute') or mn.startswith('ds_swizzle') or mn.startswith('ds_permute'):
                self.wr = R(0); self.rd = allr(1)
            else: self.rd = allr(0)
        elif mn.startswith('s_'):
            self.kind = 'salu'
            if mn.startswith('s_cmp') or mn.startswith('s_cbranch') or mn in ('s_branch', 's_waitcnt', 's_barrier', 's_endpgm', 's_sleep', 's_setprio', 's_bitcmp1_b32', 's_bitcmp0_b32'):
                self.rd = allr(0)
            else:
                self.wr = R(0); self.rd = allr(1)
        self.is_branch = mn.startswith('s_cbranch') or mn == 's_branch'

def need(p, c):
    n = 0
    pw = set(p.wr)
    if p.kind == 'valu':
        vw = set(r for r in pw if r[0] in 'va'); sw = set(r for r in pw if r[0] == 's')
        if c.kind == 'valu':
            if c.dpp and vw & set(regs_of(c.ops[1])): n = max(n, 2)
            if c.mn.startswith('v_permlane') and vw & set(c.rd): n = max(n, 2)
            if (c.mn.startswith('v_readlane') or c.mn.startswith('v_readfirstlane')) and vw & set(c.rd): n = max(n, 1)
            if sw & set(c.rd):
                n = max(n, 4 if c.mn.startswith(('v_readlane', 'v_writelane')) else 2)
            if p.mn.startswith(TRANS) and vw & set(c.rd): n = max(n, 1)
            if p.mn.startswith('v_dot2'):
                if c.mn == p.mn:
                    if vw & set(regs_of(c.ops[1]) + regs_of(c.ops[2])): n = max(n, 3)
                elif vw & (set(c.rd) | set(c.wr)): n = max(n, 3)
            if ('s', 126) in sw: n = max(n, 5)
        if p.mn.startswith('v_dot2') and c.kind in ('mfma', 'vmem', 'ds') and vw & (set(c.rd) | set(c.wr)): n = max(n, 3)
        if c.kind == 'mfma':
            if vw & set(c.rd): n = max(n, 2)
            if ('s', 126) in sw: n = max(n, 4)
        if c.kind == 'vmem' and sw & set(c.rd): n = max(n, 5)
        if c.kind in ('vmem', 'ds') and p.mn.startswith(TRANS) and vw & set(c.rd): n = max(n, 1)
    if p.kind == 'mfma':
        passes = 8 if '32x32' in p.mn else 4
        big = {4: 8, 8: 12}[passes]; ovl = {4: 6, 8: 10}[passes]; war = {4: 3, 8: 7}[passes]
        if c.kind == 'mfma':
            if pw & set(c.ab): n = max(n, big)
            if pw & set(c.c) and list(p.wr) != list(c.c): n = max(n, ovl)
            if pw & set(c.wr) and list(p.wr) != list(c.c): n = max(n, big)
        elif c.kind in ('valu', 'vmem', 'ds'):
            if pw & (set(c.rd) | set(c.wr)): n = max(n, big)
            if c.kind == 'valu' and set(p.c) & set(c.wr): n = max(n, war)
    if p.kind == 'vmem' and hasattr(p, 'store_data') and len(p.store_data) >= 3:
        if c.kind in ('valu', 'mfma', 'ds', 'vmem') and set(p.store_data) & set(c.wr): n = max(n, 2)
    if p.kind == 'salu' and ('s', 124) in pw and c.kind == 'vmem' and 'lds' in c.mods: n = max(n, 1)
    return n

def worst(p):
    if p.kind == 'mfma': return 12 if '32x32' in p.mn else 8
    if p.kind == 'valu':
        if any(r[0] == 's' for r in p.wr): return 5
        if p.mn.startswith('v_dot2'): return 3
        return 2
    if p.kind == 'vmem' and hasattr(p, 'store_data') and len(p.store_data) >= 3: return 2
    return 0

class Asm:
    def __init__(self):
        self.items = []
        self.nlabel = 0
    def __call__(self, s):
        for l in s.strip('\n').split('\n'):
            l = l.strip()
            if not l: continue
            if l.startswith(';'): self.items.append(('c', l)); continue
            if l.endswith(':'): self.items.append(('l', l[:-1])); continue
            self.items.append(('i', Ins(l)))
    def label(self, name): self.items.append(('l', name))
    def newlabel(self, p='L'):
        self.nlabel += 1
        return f'{p}_{self.nlabel}'
    def comment(self, s): self.items.append(('c', '; ' + s))
    def text(self):
        out = []; hist = []
        for k, it in self.items:
            if k == 'l': out.append(it + ':'); continue
            if k == 'c': out.append('    ' + it); continue
            d = 0; req = 0
            for p in reversed(hist):
                if d >= 14: break
                if it.is_branch: n = worst(p) - 1
                else: n = need(p, it)
                req = max(req, n - d)
                d += p.states
            if req > 0:
                nop = Ins(f's_nop {req-1}'); hist.append(nop); out.append(f'    s_nop {req-1}')
            hist.append(it); out.append('    ' + it.text)
            if it.mn in ('s_branch', 's_endpgm'): hist = []
            hist = hist[-16:]
        return '\n'.join(out) + '\n'

def vr(a, n=1): return f'v{a}' if n == 1 else f'v[{a}:{a+n-1}]'
def sr(a, n=1): return f's{a}' if n == 1 else f's[{a}:{a+n-1}]'

def kernel_desc(name, vgpr, sgpr, accum=None):
    if accum is None: accum = (vgpr + 3) // 4 * 4
    return f'''.p2align 6
.amdhsa_kernel {name}
  .amdhsa_next_free_vgpr {vgpr}
  .amdhsa_next_free_sgpr {sgpr}
  .amdhsa_accum_offset {accum}
  .amdhsa_group_segment_fixed_size 0
  .amdhsa_kernarg_size 120
  .amdhsa_user_sgpr_count 2
  .amdhsa_user_sgpr_kernarg_segment_ptr 1
  .amdhsa_system_sgpr_workgroup_id_x 1
  .amdhsa_float_denorm_mode_32 3
.end_amdhsa_kernel
'''

def build_file(kernels, launches):
    out = HEADER
    for (n, g, b, lds) in launches:
        if n is None: out += f'; @launch grid=({g},1,1) block=({b},1,1) lds={lds}\n'
        else: out += f'; @launch kernel={n} grid=({g},1,1) block=({b},1,1) lds={lds}\n'
    out += '.amdgcn_target "amdgcn-amd-amdhsa--gfx950"\n.text\n'
    for (n, a, vg, sg, ac) in kernels:
        out += f'.globl {n}\n.p2align 8\n.type {n},@function\n{n}:\n' + a.text()
    out += '.section .rodata,"a"\n'
    for (n, a, vg, sg, ac) in kernels:
        out += kernel_desc(n, vg, sg, ac)
    return out

def srd(a, d, ptr_s, size):
    a(f'''s_mov_b32 s{d}, s{ptr_s}
s_and_b32 s{d+1}, s{ptr_s+1}, 0xffff
s_mov_b32 s{d+2}, {size}
s_mov_b32 s{d+3}, 0x00020000''')
```

```python
import sys
from asmlib import *

WS_MOD = 0x00000
WS_MOD2 = 0x04000
WS_Q   = 0x08000
WS_OP  = 0x10000
WS_X1P = 0x110000
X1_RS = 0x5000
WS_ML  = 0x5A000
WS_ARR = 0x5C000
WS_EP  = 0x5F000
WS_YP  = 0x60000
WS_ST  = 0x200000
L_CNTA, L_CNTB, L_QF, L_MLF, L_CNTH, L_CNTO, L_CNTF, L_CNTV, L_GO, L_ARR, L_PUB, L_CNTK, L_CNTL, L_REL, L_CNTP = 0, 4, 8, 12, 16, 20, 24, 28, 32, 36, 40, 44, 48, 52, 56
L_GML = 0x40
L_MW = 0x80
L_LW = 0xC0
L_Q   = 0x200
L_OPL = 0x400
L_RED = 0x2400
L_AV  = 0x3400
L_STAT = 0x4400
L_PCS = 0x4480
L_X1  = 0x4800
L_TD  = 0x5A00
L_V = 0x6000
L_PS = L_V
L_PR = L_V + 0x2000
LDS_BYTES = 0x26000
SPIN_LIMIT = 100000

class Cfg:
    nt = True
    stamps = None
    stwave = 0
    ctwave = 0
    pause = 99
    pause_wgs = 164
    vsched = (1, 2, 3, 4)
    codepf = 0
    touch = True
    thr_n = 0
    thr_d = 2
    modsleep = 2
    modgap = 16
    fw_after = True
    allw = None
    kgate = True
    pre_g = 2
    vdepth = 8
    w2_early = False
    s3sleep = 0
    s4sleep = 0
    s5sleep = 0
    depth = 4
    balance = True
    w1_all = False
    w1_none = True
    nohead = False
    notail = False
    qdelay = 3
    s5sets = 3
    s5first = 6
    pace_n = 3
    w2_dyn = False
    ml_early = True
    s5gap = 7
    debt = dict(Q=7, M=5.5, Mc=0, F=0.8, O=2.5, w1=4.5)
    crit_d = 0
    crit_pre = 1
    crit_max = 32
    vfirst = 8
    noround = False
    pre = 4
    earlybar = True
    w1_from = 78
    wo_at = 'V'
    qprio = None
    qsets = 3
    qsleep = 2
    cprio = 3
    x1rep = 1
    opre = False
    w1pre = 0
    pollw2 = False
    vprio = None

NMAX, NCOM = 35, 26
def role_table(cfg):
    D = cfg.debt
    info = []
    for w in range(256):
        p, sp = w & 31, w >> 5
        head, ht, tail, ti = 0, 0, 0, 0
        if sp == 7: head, ht = 1, p
        elif sp == 6: head, ht = 1, 32 + p
        elif sp == 0: head, ht = 2, p
        elif sp == 1 and p < 22: head, ht = 2, 32 + p
        if sp < 4: tail, ti = 1, w
        elif sp == 4: tail, ti = (2, p) if p < 16 else (1, w - 16)
        elif sp == 5: tail, ti = 2, 16 + p
        elif sp == 6 and p >= 8: tail, ti = 2, 40 + p
        if cfg.nohead: head, ht = 0, 0
        if cfg.notail: tail, ti = 0, 0
        crit = int(head == 1 or (head == 2 and ht < 18))
        w1e = int(tail == 1 and not cfg.w1_none and (cfg.w1_all or head == 0))
        d = {0: 0, 1: D['Q'], 2: D['M']}[head] + (D['Mc'] if head == 2 and crit else 0)
        d += {0: 0, 1: D['F'], 2: D['O']}[tail] + (D['w1'] if w1e else 0)
        info.append([head, ht, tail, ti, crit, w1e, d])
    tab = [0] * 256
    for p in range(32):
        ws_ = [p + 32 * sp for sp in range(8)]
        ds = [info[w][6] for w in ws_]
        n = [32] * 8
        if cfg.balance:
            n = [NCOM] * 8
            for _ in range(256 - 8 * NCOM):
                k = min((i for i in range(8) if n[i] < NMAX), key=lambda i: n[i] + ds[i])
                n[k] += 1
        st = 0
        for i, w in enumerate(ws_):
            h, ht, t, ti, cr, w1e, d = info[w]
            tab[w] = st | (n[i] - NCOM) << 8 | h << 12 | ht << 14 | t << 20 | ti << 22 | cr << 30 | w1e << 31
            st += n[i]
        assert st == 256
    return tab

def gen(cfg, fname):
    a = Asm()
    kn = NAME + '_kernel'
    NT = ' nt' if cfg.nt else ''
    PX, PK, PV, PWQ, PWO, PW1, PB1, PW2, PB2, PC, PWM, POUT, PDBG, PWS = 36, 38, 40, 42, 44, 48, 50, 52, 54, 56, 58, 60, 62, 64
    DPP = 'row_mask:0xf bank_mask:0xf'
    def stamp(name):
        if cfg.stamps and name in cfg.stamps:
            i = cfg.stamps[name]; a(f's_memrealtime s[{84+2*i}:{85+2*i}]')
    def store_stamps(slot):
        a('s_waitcnt lgkmcnt(0)')
        for i in range(8): a(f'v_mov_b32 v{2+i}, s{84+2*i}')
        a(f'''s_lshl_b32 s78, s2, 6
s_add_u32 s78, s78, {WS_ST + 32*slot}
v_mov_b32 v10, s78
s_mov_b64 exec, 1
buffer_store_dwordx4 v[2:5], v10, s[12:15], 0 offen
buffer_store_dwordx4 v[6:9], v10, s[12:15], 0 offen offset:16
s_mov_b64 exec, -1''')
    def chain_end():
        if cfg.stamps and not cfg.allw:
            a(f's_cmp_lg_u32 s3, {cfg.ctwave}\ns_cbranch_scc1 L_end')
            stamp('c_end'); store_stamps(0)
        a('s_endpgm')

    def lds_spin(off, target, vz, vt, sleep=1):
        L = a.newlabel('SP'); D = a.newlabel('SPD')
        a(f's_mov_b32 s80, 0')
        a.label(L)
        a(f'''ds_read_b32 v{vt}, v{vz} offset:{off}
s_waitcnt lgkmcnt(0)
v_readfirstlane_b32 s81, v{vt}
s_cmp_ge_u32 s81, {target}
s_cbranch_scc1 {D}
s_add_u32 s80, s80, 1
s_cmp_gt_u32 s80, {SPIN_LIMIT}
s_cbranch_scc1 {D}
s_sleep {sleep}
s_branch {L}''')
        a.label(D)
    def lds_inc(off, vz, vt):
        a(f'''s_waitcnt lgkmcnt(0)
v_mov_b32 v{vt}, 1
s_mov_b64 exec, 1
ds_add_u32 v{vz}, v{vt} offset:{off}
s_mov_b64 exec, -1''')
    def lds_last(off, n, vz, vt, skip_label):
        a(f'''v_mov_b32 v{vt}, 1
s_mov_b64 exec, 1
ds_add_rtn_u32 v{vt}, v{vz}, v{vt} offset:{off}
s_mov_b64 exec, -1
s_waitcnt lgkmcnt(0)
v_readfirstlane_b32 s81, v{vt}
s_cmp_lg_u32 s81, {n-1}
s_cbranch_scc1 {skip_label}''')

    def pend_poll(loads, sleep=0, hook=None, pre=None, on_ok=None):
        L = a.newlabel('PL'); D = a.newlabel('PLD')
        n = len(loads)
        W = a.newlabel('PW')
        if pre:
            for k, (dst, nd, va, so, imm) in enumerate(loads):
                op = {2: 'dwordx2', 3: 'dwordx3', 4: 'dwordx4'}[nd]
                a(f'buffer_load_{op} {vr(dst, nd)}, v{va}, s[12:15], {so} offen offset:{imm} sc1')
            pre()
        a(f's_mov_b32 s80, 0\ns_mov_b32 s82, {(1 << n) - 1}')
        if pre: a(f's_branch {W}')
        a.label(L)
        for k, (dst, nd, va, so, imm) in enumerate(loads):
            op = {2: 'dwordx2', 3: 'dwordx3', 4: 'dwordx4'}[nd]; X = a.newlabel('PI')
            a(f's_bitcmp1_b32 s82, {k}\ns_cbranch_scc0 {X}')
            a(f'buffer_load_{op} {vr(dst, nd)}, v{va}, s[12:15], {so} offen offset:{imm} sc1')
            a.label(X)
        a.label(W)
        a('s_mov_b32 s81, s82\ns_waitcnt vmcnt(0)')
        for k, (dst, nd, va, so, imm) in enumerate(loads):
            X = a.newlabel('PC')
            a(f's_bitcmp1_b32 s81, {k}\ns_cbranch_scc0 {X}')
            a(f'v_cmp_u_f32 vcc, v{dst}, v{dst+1}')
            if nd >= 3: a(f'v_cmp_u_f32 s[66:67], v{dst+2}, v{dst+nd-1}\ns_or_b64 vcc, vcc, s[66:67]')
            else: a('s_cmp_lg_u64 vcc, 0')
            a(f's_cbranch_scc1 {X}\ns_bitset0_b32 s82, {k}')
            if on_ok: on_ok(k)
            a.label(X)
        a(f'''s_cmp_eq_u32 s82, 0
s_cbranch_scc1 {D}
s_add_u32 s80, s80, 1
s_cmp_gt_u32 s80, {SPIN_LIMIT}
s_cbranch_scc1 {D}
s_bcnt1_i32_b32 s81, s82
s_cmp_le_u32 s81, {cfg.pace_n * n // 8}
s_cbranch_scc1 {L}''')
        if hook:
            a(f's_cmp_lg_u32 s83, 0\ns_cbranch_scc1 {L}')
            hook()
        a(f's_sleep {sleep}\ns_branch {L}')
        a.label(D)
        if hook:
            H = a.newlabel('PH')
            a(f's_cmp_lg_u32 s83, 0\ns_cbranch_scc1 {H}')
            hook()
            a.label(H)
    def sum_poll(groups, vt, hook=None):
        pend_poll([l for g in groups for l in g], cfg.s4sleep, hook)
        st = 1
        while st < 8:
            for g in groups:
                for i in range(0, len(g), 2 * st):
                    for h in range(0, g[0][1], 2):
                        a(f'v_pk_add_f32 {vr(g[i][0]+h,2)}, {vr(g[i][0]+h,2)}, {vr(g[i+st][0]+h,2)}')
            st *= 2

    def tpoll(loads, sleep=2, extra=None):
        L = a.newlabel('TP'); D = a.newlabel('TPD')
        a('s_mov_b32 s80, 0')
        a.label(L)
        for (dst, va, so, imm) in loads:
            a(f'buffer_load_dwordx4 {vr(dst,4)}, v{va}, s[12:15], {so} offen offset:{imm} sc1')
        a('s_waitcnt vmcnt(0)')
        for i, (dst, va, so, imm) in enumerate(loads):
            if i == 0: a(f'v_cmp_ne_u64 s[66:67], s[32:33], {vr(dst+2,2)}')
            else: a(f'v_cmp_ne_u64 vcc, s[32:33], {vr(dst+2,2)}\ns_or_b64 s[66:67], s[66:67], vcc')
        a(f'''s_cmp_eq_u64 s[66:67], 0
s_cbranch_scc1 {D}
s_add_u32 s80, s80, 1
s_cmp_gt_u32 s80, {SPIN_LIMIT}
s_cbranch_scc1 {D}
s_sleep {sleep}
s_branch {L}''')
        a.label(D)

    def poll_pipe(dst, loads, sets, gap=16, sleep=2):
        L = a.newlabel('PP'); n = len(sets); m = len(loads)
        Ds = [a.newlabel('PPD') for _ in sets]; E = a.newlabel('PPE')
        def ld(r):
            for k, (va, so) in enumerate(loads): a(f'buffer_load_dwordx4 {vr(r+4*k,4)}, v{va}, s[12:15], {so} offen sc1')
        a('s_mov_b32 s80, 0')
        for i, r in enumerate(sets):
            ld(r)
            if i + 1 < n: a(f's_sleep {gap}')
        a.label(L)
        for i, r in enumerate(sets):
            a(f's_waitcnt vmcnt({(n-1)*m})')
            if m == 1: a(f'v_cmp_ne_u64 vcc, s[32:33], {vr(r+2,2)}\ns_cbranch_vccz {Ds[i]}')
            else:
                a(f'v_cmp_ne_u64 s[66:67], s[32:33], {vr(r+2,2)}')
                for k in range(1, m): a(f'v_cmp_ne_u64 vcc, s[32:33], {vr(r+4*k+2,2)}\ns_or_b64 s[66:67], s[66:67], vcc')
                a(f's_cbranch_scc0 {Ds[i]}')
            a(f's_sleep {sleep}')
            ld(r)
        a(f'''s_add_u32 s80, s80, 1
s_cmp_gt_u32 s80, {SPIN_LIMIT}
s_cbranch_scc0 {L}''')
        for i, r in enumerate(sets):
            a.label(Ds[i])
            for k in range(m): a(f'v_mov_b32 v{dst+2*k}, v{r+4*k}\nv_mov_b32 v{dst+2*k+1}, v{r+4*k+1}')
            if i + 1 < n: a(f's_branch {E}')
        a.label(E)

    def wait_arrival(R):
        L = a.newlabel('AR'); D = a.newlabel('ARD')
        a(f'''s_mov_b32 s80, 0
v_lshlrev_b32 v2, 4, v1
s_mov_b32 s72, {WS_ARR}''')
        a.label(L)
        for i in range(4): a(f'buffer_load_dwordx2 {vr(R+2*i,2)}, v2, s[12:15], s72 offen offset:{1024*i} sc1')
        a('s_waitcnt vmcnt(0)')
        for i in range(4):
            if i == 0: a(f'v_cmp_ne_u64 s[66:67], s[32:33], {vr(R,2)}')
            else: a(f'v_cmp_ne_u64 vcc, s[32:33], {vr(R+2*i,2)}\ns_or_b64 s[66:67], s[66:67], vcc')
        a(f'''s_cbranch_scc0 {D}
s_add_u32 s80, s80, 1
s_cmp_gt_u32 s80, {SPIN_LIMIT}
s_cbranch_scc1 {D}
s_sleep 32
s_branch {L}''')
        a.label(D)

    def transpose8(R, T):
        for d in range(4):
            for dd in range(4):
                a(f'v_perm_b32 v{T+4*(2*d)+dd}, v{R+4*(2*dd+1)+d}, v{R+4*(2*dd)+d}, s78')
                a(f'v_perm_b32 v{T+4*(2*d+1)+dd}, v{R+4*(2*dd+1)+d}, v{R+4*(2*dd)+d}, s79')
    def transpose4(R, T):
        for d in range(4):
            for dd in range(2):
                a(f'v_perm_b32 v{T+2*(2*d)+dd}, v{R+4*(2*dd+1)+d}, v{R+4*(2*dd)+d}, s78')
                a(f'v_perm_b32 v{T+2*(2*d+1)+dd}, v{R+4*(2*dd+1)+d}, v{R+4*(2*dd)+d}, s79')
    def tr8(R, t0, t1):
        P = lambda dd, d: (R + 4 * (2 * dd) + d, R + 4 * (2 * dd + 1) + d)
        for d in range(4):
            x, y = P(d, d)
            a(f'v_perm_b32 v{t0}, v{y}, v{x}, s78\nv_perm_b32 v{y}, v{y}, v{x}, s79\nv_mov_b32 v{x}, v{t0}')
            for dd in range(d + 1, 4):
                x, y = P(dd, d); u, w = P(d, dd)
                a(f'''v_perm_b32 v{t0}, v{y}, v{x}, s78
v_perm_b32 v{t1}, v{y}, v{x}, s79
v_perm_b32 v{x}, v{w}, v{u}, s78
v_perm_b32 v{y}, v{w}, v{u}, s79
v_mov_b32 v{u}, v{t0}
v_mov_b32 v{w}, v{t1}''')
    def rnd(regs, tmps):
        prs = [(regs[i], regs[i + 1] if i + 1 < len(regs) else None) for i in range(0, len(regs), 2)]
        if isinstance(tmps, int): tmps = [tmps]
        for k in range(0, len(prs), len(tmps)):
            grp = prs[k:k + len(tmps)]
            for (x, y), t in zip(grp, tmps): a(f'v_cvt_pk_bf16_f32 v{t}, v{x}, v{y if y is not None else x}')
            for (x, y), t in zip(grp, tmps):
                a(f'v_lshlrev_b32 v{x}, 16, v{t}')
                if y is not None: a(f'v_and_b32 v{y}, 0xffff0000, v{t}')
    def unpack(src, dst):
        a(f'v_and_b32 v{dst+1}, 0xffff0000, v{src}')
        a(f'v_lshlrev_b32 v{dst}, 16, v{src}')
    def half_reduce(regs, tmps, op='v_add_f32'):
        for sh in (8, 4, 2, 1):
            for r in regs: a(f'{op}_dpp v{r}, v{r}, v{r} row_ror:{sh} {DPP}')
        for r, t in zip(regs, tmps): a(f'v_mov_b32 v{t}, v{r}')
        for r, t in zip(regs, tmps): a(f'v_permlane16_swap_b32 v{r}, v{t}')
        for r, t in zip(regs, tmps): a(f'{op} v{r}, v{r}, v{t}')
    def ln_finish(mean, var, t):
        rnd([mean, var], t)
        a(f'v_add_f32 v{var}, 0x3727c5ac, v{var}')
        rnd([var], t)
        a(f'v_sqrt_f32 v{var}, v{var}')
        rnd([var], t)
        a(f'v_rcp_f32 v{var}, v{var}')

    a(f'''s_cmp_ge_u32 s2, 256
s_cbranch_scc1 L_end
s_load_dwordx16 s[36:51], s[0:1], 0
s_load_dwordx8 s[52:59], s[0:1], 64
s_load_dwordx4 s[60:63], s[0:1], 96
s_load_dwordx2 s[64:65], s[0:1], 112
s_getpc_b64 s[66:67]
L_pc0:
s_lshl_b32 s68, s2, 2
s_add_u32 s66, s66, L_table-L_pc0
s_addc_u32 s67, s67, 0
s_load_dword s100, s[66:67], s68
v_lshrrev_b32 v2, 6, v0
v_and_b32 v1, 63, v0
v_readfirstlane_b32 s3, v2
v_mov_b32 v0, 0''')
    stamp('start')
    if cfg.earlybar:
        a('''s_cmp_lg_u32 s3, 0
s_cbranch_scc1 L_noinit0
v_lshlrev_b32 v2, 2, v1
ds_write_b32 v2, v0
s_waitcnt lgkmcnt(0)
L_noinit0:
s_barrier''')
    a('''s_cmp_ge_u32 s3, 4
s_cbranch_scc1 L_stream''')
    RAW, TR, RAW2, TR2, W2, W2X = 16, 48, 80, 96, 112, 80
    A, A2 = 144, 148
    RA, RB, RC, ACC, AA = 16, 48, 80, 112, 144
    XS = 156
    a(f"""s_setprio {cfg.cprio}
s_mov_b32 s78, 0x05040100
s_mov_b32 s79, 0x07060302
s_waitcnt lgkmcnt(0)
s_bfe_u32 s83, s100, 0x2000c
s_bfe_u32 s71, s100, 0x6000e
s_bfe_u32 s69, s100, 0x20014
s_bfe_u32 s101, s100, 0x80016
s_lshl_b32 s74, s3, 1
s_min_u32 s75, s3, 1
s_add_u32 s74, s74, s75
s_mov_b32 s70, 8192
s_cmp_eq_u32 s83, 2
s_cselect_b32 s70, 6912, s70
v_lshrrev_b32 v14, 4, v1
v_bfe_u32 v2, v1, 2, 1
v_lshl_add_u32 v14, v14, 1, v2
v_and_b32 v2, 1, v1
v_mul_u32_u24 v2, 1152, v2
v_lshl_add_u32 v6, v14, 4, v2
v_lshrrev_b32 v3, 3, v1
v_mul_lo_u32 v3, v3, s70
v_and_b32 v8, 7, v1
v_lshlrev_b32 v8, 4, v8
v_lshl_add_u32 v4, v3, 3, v8
s_lshl_b32 s72, s71, 7
s_lshl_b32 s73, s74, 6
s_mul_i32 s73, s73, s70
s_add_u32 s73, s73, s72
s_mul_i32 s75, s70, 56
s_lshl_b32 s74, s74, 7
s_waitcnt lgkmcnt(0)""")
    stamp('c_karg')
    srd(a, 12, PWS, SZ['ws'])
    a('s_cmp_lg_u32 s3, 3\ns_cbranch_scc1 L_c_nopz0')
    for r in range(4): a(f'v_mov_b32 v{112+r}, -1')
    a(f'''v_lshlrev_b32 v116, 4, v1
s_and_b32 s34, s2, 31
s_lshl_b32 s34, s34, 3
s_lshr_b32 s35, s2, 5
s_add_u32 s34, s34, s35
s_lshl_b32 s34, s34, 10
s_add_u32 s34, s34, {WS_OP}
buffer_store_dwordx4 v[112:115], v116, s[12:15], s34 offen sc1
s_cmp_lg_u32 s69, 1
s_cbranch_scc1 L_pz_o
s_mul_i32 s35, s101, 4608
s_add_u32 s35, s35, {WS_YP}
buffer_store_dwordx4 v[112:115], v116, s[12:15], s35 offen sc1
buffer_store_dwordx4 v[112:115], v116, s[12:15], s35 offen offset:1024 sc1
buffer_store_dwordx4 v[112:115], v116, s[12:15], s35 offen offset:2048 sc1
buffer_store_dwordx4 v[112:115], v116, s[12:15], s35 offen offset:3072 sc1
s_add_u32 s35, s35, 4096
s_mov_b32 exec_hi, 0
buffer_store_dwordx4 v[112:115], v116, s[12:15], s35 offen sc1
s_mov_b64 exec, -1
s_branch L_pz_done
L_pz_o:
s_cmp_lg_u32 s69, 2
s_cbranch_scc1 L_pz_done
s_mov_b32 s35, s101
s_mul_i32 s66, s35, 57
s_lshr_b32 s66, s66, 9
s_mul_i32 s67, s66, 9
s_sub_u32 s67, s35, s67
s_mul_i32 s35, s66, 2304
s_lshl_b32 s67, s67, 7
s_add_u32 s35, s35, s67
s_add_u32 s35, s35, {WS_X1P}
v_and_b32 v117, 31, v1
v_lshlrev_b32 v117, 2, v117
v_lshrrev_b32 v118, 5, v1
v_mul_u32_u24 v118, 1152, v118
v_add_u32 v117, v117, v118
''' + ''.join(f'buffer_store_dword v112, v117, s[12:15], s35 offen sc1\ns_add_u32 s35, s35, {X1_RS}\n' for _ in range(cfg.x1rep)) + f'''L_pz_done:
L_c_nopz0:''')
    a(f"""s_mov_b32 s76, {WS_EP}
s_cmp_eq_u32 s83, 0
s_cbranch_scc1 L_nohead0
s_cmp_eq_u32 s83, 2
s_cselect_b32 s20, s{PWM}, s{PWQ}
s_cselect_b32 s21, s{PWM+1}, s{PWQ+1}
s_mov_b32 s22, {SZ['wq']}
s_cselect_b32 s22, {SZ['wmod']}, s22
s_mov_b32 s23, 0x00020000
s_cselect_b32 s28, s{PC}, s{PX}
s_cselect_b32 s29, s{PC+1}, s{PX+1}
s_mov_b32 s30, 2304
s_mov_b32 s31, 0x00020000
buffer_load_dwordx4 {vr(AA,4)}, v6, s[28:31], s74 offen
buffer_load_dwordx4 {vr(AA+4,4)}, v6, s[28:31], s74 offen offset:128
buffer_load_dwordx4 {vr(AA+8,4)}, v6, s[28:31], s74 offen offset:256
buffer_load_dwordx2 v[12:13], v0, s[12:15], s76 offen sc1
s_cbranch_scc1 L_h_w
v_lshrrev_b32 v2, 5, v1
v_mul_u32_u24 v2, 1152, v2
v_and_b32 v3, 31, v1
v_lshl_add_u32 v2, v3, 4, v2
buffer_load_dwordx4 {vr(XS,4)}, v2, s[28:31], 0 offen
buffer_load_dwordx4 {vr(XS+4,4)}, v2, s[28:31], 0 offen offset:512
v_mov_b32 v{XS+8}, 0
v_mov_b32 v{XS+9}, 0
v_mov_b32 v{XS+10}, 0
v_mov_b32 v{XS+11}, 0
s_mov_b32 exec_lo, 0xff
s_mov_b32 exec_hi, 0xff
buffer_load_dwordx4 {vr(XS+8,4)}, v2, s[28:31], 0 offen offset:1024
s_mov_b64 exec, -1
L_h_w:""")
    def blk_loads(R, last):
        for j in range(8):
            a(f'buffer_load_dwordx4 {vr(R+4*j,4)}, v4, s[20:23], s73 offen{NT}')
            a('s_add_u32 s73, s73, s70')
        if not last: a('s_add_u32 s73, s73, s75')
    blk_loads(RA, False); blk_loads(RB, False)
    a('s_cmp_lg_u32 s3, 0\ns_cbranch_scc1 L_h_w2')
    blk_loads(RC, True)
    a.label('L_h_w2')
    stamp('c_bar')
    def get_tag():
        a("""v_readfirstlane_b32 s32, v12
v_readfirstlane_b32 s33, v13
s_add_u32 s32, s32, 1
s_addc_u32 s33, s33, 0""")
    a('s_waitcnt vmcnt(16)')
    get_tag()
    a('s_cmp_eq_u32 s83, 1\ns_cbranch_scc1 L_hq')
    a('s_mov_b32 s82, 0xbfb8aa3b')
    for r in range(AA, AA + 12, 2):
        unpack(r, 2); unpack(r + 1, 4)
        for i in range(4): a(f'v_mul_f32 v{6+i}, s82, v{2+i}')
        for i in range(4): a(f'v_exp_f32 v{6+i}, v{6+i}')
        for i in range(4): a(f'v_add_f32 v{6+i}, 1.0, v{6+i}')
        for i in range(4): a(f'v_rcp_f32 v{6+i}, v{6+i}')
        for i in range(4): a(f'v_mul_f32 v{2+i}, v{2+i}, v{6+i}')
        a(f'v_cvt_pk_bf16_f32 v{r}, v2, v3\nv_cvt_pk_bf16_f32 v{r+1}, v4, v5')
    def head_tr():
        a('s_waitcnt vmcnt(8)')
        tr8(RA, 2, 3)
        a('s_waitcnt vmcnt(0)')
        stamp('c_w')
        tr8(RB, 2, 3)
        X = a.newlabel('HT')
        a(f's_cmp_lg_u32 s3, 0\ns_cbranch_scc1 {X}')
        tr8(RC, 2, 3)
        a.label(X)
    head_tr()
    a.label('L_hgemv')
    def g8_addr(v, t):
        a(f"""v_and_b32 v{v}, 7, v1
v_lshlrev_b32 v{v}, 6, v{v}
v_lshrrev_b32 v{t}, 4, v1
v_lshl_add_u32 v{v}, v{t}, 9, v{v}
s_lshl_b32 s72, s3, 10
v_add_u32 v{v}, s72, v{v}""")
    def g8_write(v, D):
        a('s_mov_b32 exec_lo, 0xff0000ff\ns_mov_b32 exec_hi, 0')
        for e in range(8): a(f'ds_write_b64 v{v}, {vr(D+4*e,2)} offset:{L_RED+8*e}')
        a('s_mov_b64 exec, -1')
    def g8_sum(T, va):
        for p in range(8): a(f'ds_read_b64 {vr(T+2*p,2)}, v{va} offset:{L_RED+512*p}')
        for p in range(0, 8, 2):
            a(f's_waitcnt lgkmcnt({6-p})')
            a(f'v_pk_add_f32 {vr(T+2*p,2)}, {vr(T+2*p,2)}, {vr(T+2*p+2,2)}')
        a(f"""v_pk_add_f32 {vr(T,2)}, {vr(T,2)}, {vr(T+4,2)}
v_pk_add_f32 {vr(T+8,2)}, {vr(T+8,2)}, {vr(T+12,2)}
v_pk_add_f32 {vr(T,2)}, {vr(T,2)}, {vr(T+8,2)}""")
    for e in range(8): a(f'v_mfma_f32_16x16x32_bf16 {vr(ACC+4*e,4)}, {vr(AA,4)}, {vr(RA+4*e,4)}, 0')
    for e in range(8): a(f'v_mfma_f32_16x16x32_bf16 {vr(ACC+4*e,4)}, {vr(AA+4,4)}, {vr(RB+4*e,4)}, {vr(ACC+4*e,4)}')
    a('s_cmp_lg_u32 s3, 0\ns_cbranch_scc1 L_hg2')
    for e in range(8): a(f'v_mfma_f32_16x16x32_bf16 {vr(ACC+4*e,4)}, {vr(AA+8,4)}, {vr(RC+4*e,4)}, {vr(ACC+4*e,4)}')
    a.label('L_hg2')
    g8_addr(2, 3)
    a('v_lshlrev_b32 v9, 3, v1')
    g8_write(2, ACC)
    lds_last(L_CNTH, 4, 0, 2, 'L_head_done')
    g8_sum(RA, 9)
    a(f"""v_mov_b32 v6, s32
v_mov_b32 v7, s33
s_cmp_eq_u32 s83, 2
s_cbranch_scc1 L_hs_m
v_mov_b32 v10, s32
v_mov_b32 v11, s33
v_mov_b32_dpp v2, v{RA} quad_perm:[1,0,3,2] {DPP}
v_mov_b32_dpp v3, v{RA+1} quad_perm:[1,0,3,2] {DPP}
v_cvt_pk_bf16_f32 v4, v{RA}, v2
v_cvt_pk_bf16_f32 v8, v{RA+1}, v3
v_mov_b32_dpp v5, v4 quad_perm:[2,3,0,1] {DPP}
v_mov_b32_dpp v9, v8 quad_perm:[2,3,0,1] {DPP}
v_lshlrev_b32 v2, 2, v1
s_lshl_b32 s72, s71, 8
s_add_u32 s72, s72, {WS_Q}
s_add_u32 s73, s72, 16384
s_mov_b32 exec_lo, 0x11111111
s_mov_b32 exec_hi, 0x11111111
buffer_store_dwordx4 v[4:7], v2, s[12:15], s72 offen sc1
buffer_store_dwordx4 v[8:11], v2, s[12:15], s73 offen sc1
s_mov_b64 exec, 1
v_mov_b32 v2, 1
ds_write_b32 v0, v2 offset:{L_REL}
s_mov_b64 exec, -1
s_branch L_head_done
L_hs_m:
v_cvt_pk_bf16_f32 v4, v{RA}, v{RA+1}
s_cmp_ge_u32 s71, 18
s_cbranch_scc1 L_hs_m2
v_mov_b32_dpp v5, v4 quad_perm:[1,0,3,2] {DPP}
s_lshl_b32 s72, s71, 9
s_add_u32 s72, s72, {WS_MOD}
s_mov_b32 exec_lo, 0x55555555
s_mov_b32 exec_hi, 0x55555555
buffer_store_dwordx4 v[4:7], v9, s[12:15], s72 offen sc1
s_mov_b64 exec, 1
v_mov_b32 v2, 1
ds_write_b32 v0, v2 offset:{L_REL}
s_mov_b64 exec, -1
s_branch L_head_done
L_hs_m2:
v_lshlrev_b32 v2, 2, v1
s_lshl_b32 s72, s71, 8
s_add_u32 s72, s72, {WS_MOD2 - 18*256}
buffer_store_dword v4, v2, s[12:15], s72 offen sc1
s_waitcnt vmcnt(0)""")
    lds_inc(L_GO, 0, 2)
    a('s_branch L_head_done')
    a.label('L_hq')
    N0 = ACC
    for i in range(12): unpack(XS + i, N0 + 2 * i)
    a(f'v_pk_add_f32 v[2:3], {vr(N0,2)}, {vr(N0+2,2)}')
    for i in range(4, 24, 2): a(f'v_pk_add_f32 v[2:3], v[2:3], {vr(N0+i,2)}')
    a('v_add_f32 v2, v2, v3')
    half_reduce([2], [3])
    a('s_mov_b32 s82, 0x3ae38e39\nv_mul_f32 v2, s82, v2')
    a('v_and_b32 v4, 31, v1\nv_cmp_gt_u32 vcc, 8, v4')
    for i in range(24): a(f'v_sub_f32 v{N0+i}, v{N0+i}, v2')
    for i in range(16, 24): a(f'v_cndmask_b32 v{N0+i}, 0, v{N0+i}, vcc')
    a(f'v_mul_f32 v3, v{N0}, v{N0}')
    for i in range(1, 24): a(f'v_fmac_f32 v3, v{N0+i}, v{N0+i}')
    half_reduce([3], [4])
    a('v_mul_f32 v3, s82, v3')
    ln_finish(2, 3, 4)
    a("""v_readlane_b32 s72, v2, 0
v_readlane_b32 s73, v2, 32
v_readlane_b32 s76, v3, 0
v_readlane_b32 s75, v3, 32
s_mov_b32 s66, 0xaaaaaaaa
s_mov_b32 s67, 0xaaaaaaaa
v_mov_b32 v12, s72
v_mov_b32 v13, s73
v_cndmask_b32 v12, v12, v13, s[66:67]
v_mov_b32 v13, s76
v_mov_b32 v2, s75
v_cndmask_b32 v13, v13, v2, s[66:67]""")
    NV = list(range(N0, N0 + 24))
    for i in range(12): unpack(AA + i, N0 + 2 * i)
    for r in NV: a(f'v_sub_f32 v{r}, v{r}, v12')
    rnd(NV, [2, 3, 4, 5])
    for r in NV: a(f'v_mul_f32 v{r}, v{r}, v13')
    rnd(NV, [2, 3, 4, 5])
    head_tr()
    a('s_cmp_lg_u32 s3, 3\ns_cbranch_scc1 L_q_nopz')
    a(f'''v_mov_b32 v10, s32
v_mov_b32 v11, s33
s_lshl_b32 s35, s2, 4
s_add_u32 s35, s35, {WS_ARR}
s_branch L_q_pzgo''')
    lds_spin(L_GO, 1, 0, 2, sleep=4)
    a(f'''L_q_pzgo:
s_waitcnt vmcnt(0)
s_mov_b64 exec, 1
buffer_store_dwordx2 v[10:11], v0, s[12:15], s35 offen sc1
s_mov_b64 exec, -1''')
    lds_inc(L_CNTA, 0, 2)
    a.label('L_q_nopz')
    a(f"""v_lshlrev_b32 v4, 4, v1
v_lshrrev_b32 v5, 5, v1
v_mul_u32_u24 v5, {4608 - 512}, v5
v_add_u32 v5, v5, v4
s_lshl_b32 s72, s74, 2
s_add_u32 s72, s72, {WS_MOD}
s_add_u32 s73, s72, 4608
s_mov_b32 s76, {WS_MOD + 1024}
v_and_b32 v6, 1, v1
v_lshlrev_b32 v6, 4, v6
v_sub_u32 v6, 16, v6
s_lshl_b32 s75, s3, 10
s_add_u32 s75, s75, {L_X1}
v_lshlrev_b32 v7, 3, v1
v_add_u32 v8, s75, v7
v_lshlrev_b32 v10, 5, v14
v_add_u32 v9, s75, v10
s_cmp_eq_u32 s3, 0
s_cbranch_scc1 L_hq_x""")
    tpoll([(XS, 4, 's72', 0), (XS + 4, 4, 's73', 0)], sleep=cfg.modsleep)
    a('s_branch L_hq_j')
    a.label('L_hq_x')
    tpoll([(XS, 4, 's72', 0), (XS + 4, 4, 's73', 0), (XS + 8, 5, 's76', 0)], sleep=cfg.modsleep)
    a(f'ds_write_b64 v7, {vr(XS+8,2)} offset:{L_TD}')
    a.label('L_hq_j')
    stamp('c_mod')
    a(f'ds_write_b64 v8, {vr(XS,2)}\nds_write_b64 v8, {vr(XS+4,2)} offset:512\ns_waitcnt lgkmcnt(0)')
    SAr = list(range(136, 144)); CAr = list(range(XS, XS + 8))
    for k in range(3):
        va, o1, o2 = (9, 256 * k, 512 + 256 * k) if k < 2 else (10, L_TD, L_TD + 256)
        a(f"""ds_read_b128 {vr(CAr[0],4)}, v{va} offset:{o2}
ds_read_b128 {vr(CAr[4],4)}, v{va} offset:{o2+16}
ds_read_b128 {vr(SAr[0],4)}, v{va} offset:{o1}
ds_read_b128 {vr(SAr[4],4)}, v{va} offset:{o1+16}
s_waitcnt lgkmcnt(2)""")
        nv = NV[8 * k:8 * k + 8]
        for r in CAr: a(f'v_lshlrev_b32 v{r}, v6, v{r}')
        for r in CAr: a(f'v_and_b32 v{r}, 0xffff0000, v{r}')
        for r in CAr: a(f'v_add_f32 v{r}, 1.0, v{r}')
        rnd(CAr, [2, 3, 4, 5])
        for i in range(0, 8, 2): a(f'v_pk_mul_f32 {vr(nv[i],2)}, {vr(nv[i],2)}, {vr(CAr[i],2)}')
        rnd(nv, [2, 3, 4, 5])
        a('s_waitcnt lgkmcnt(0)')
        for r in SAr: a(f'v_lshlrev_b32 v{r}, v6, v{r}')
        for r in SAr: a(f'v_and_b32 v{r}, 0xffff0000, v{r}')
        for i in range(0, 8, 2): a(f'v_pk_add_f32 {vr(nv[i],2)}, {vr(nv[i],2)}, {vr(SAr[i],2)}')
        for i in range(4): a(f'v_cvt_pk_bf16_f32 v{AA+4*k+i}, v{nv[2*i]}, v{nv[2*i+1]}')
        if k == 1: a('s_cmp_lg_u32 s3, 0\ns_cbranch_scc1 L_hgemv')
    a('s_branch L_hgemv')
    a.label('L_nohead0')
    a('buffer_load_dwordx2 v[12:13], v0, s[12:15], s76 offen sc1')
    if cfg.codepf:
        a(f"""s_sub_u32 s72, s2, 160
s_cmp_ge_u32 s72, 16
s_cbranch_scc1 L_nopf
s_getpc_b64 s[72:73]
L_pc:
s_sub_u32 s72, s72, L_pc-{kn}
s_subb_u32 s73, s73, 0
v_lshlrev_b32 v2, 4, v1
s_lshl_b32 s74, s3, 10
v_add_u32 v2, s74, v2""")
        for i in range((cfg.codepf + 4095) // 4096):
            a(f"""v_cmp_gt_u32 vcc, {cfg.codepf - 16 - 4096*i + 1}, v2
s_and_saveexec_b64 s[66:67], vcc
s_cbranch_execz L_pf{i}
global_load_dwordx4 {vr(RAW+4*i,4)}, v2, s[72:73]
L_pf{i}:
s_mov_b64 exec, -1
s_add_u32 s72, s72, 4096
s_addc_u32 s73, s73, 0""")
        a.label('L_nopf')
    a('s_waitcnt vmcnt(0)')
    get_tag()
    def narrow_issue(srdn, xwave, gate=None):
        for j in range(8):
            if gate and j == gate[0]: gate[1]()
            a(f'buffer_load_dwordx4 {vr(RAW+4*j,4)}, v4, s[{srdn}:{srdn+3}], s73 offen{NT}')
            if j < 7: a('s_add_u32 s73, s73, s70')
        X = a.newlabel('NX')
        a(f"""s_cmp_lg_u32 s3, {xwave}
s_cbranch_scc1 {X}
s_lshl_b32 s73, s70, 9
s_add_u32 s73, s73, s72""")
        for j in range(4):
            a(f'buffer_load_dwordx4 {vr(RAW2+4*j,4)}, v5, s[{srdn}:{srdn+3}], s73 offen{NT}')
            if j < 3: a('s_add_u32 s73, s73, s70')
        a.label(X)
    def narrow_addr(v):
        a(f"""v_lshrrev_b32 v{v}, 4, v1
v_and_b32 v3, 3, v1
v_lshlrev_b32 v3, 6, v3
v_lshl_add_u32 v{v}, v{v}, 8, v3
s_lshl_b32 s72, s3, 10
v_add_u32 v{v}, s72, v{v}""")
    def narrow_write(v):
        a('s_mov_b32 exec_lo, 0x00f0000f\ns_mov_b32 exec_hi, 0xf0000f00')
        for e in range(8): a(f'ds_write_b64 v{v}, {vr(RAW+4*e,2)} offset:{L_RED+8*e}')
        a('s_mov_b64 exec, -1')
    def narrow_sum(dst, va):
        for p in range(16): a(f'ds_read_b32 v{TR+p}, v{va} offset:{L_RED+256*p}')
        for p in range(0, 16, 4):
            a(f's_waitcnt lgkmcnt({12-p})')
            a(f'v_pk_add_f32 {vr(TR+p,2)}, {vr(TR+p,2)}, {vr(TR+p+2,2)}')
        a(f"""v_pk_add_f32 {vr(TR,2)}, {vr(TR,2)}, {vr(TR+4,2)}
v_pk_add_f32 {vr(TR+8,2)}, {vr(TR+8,2)}, {vr(TR+12,2)}
v_pk_add_f32 {vr(TR,2)}, {vr(TR,2)}, {vr(TR+8,2)}
v_add_f32 v{dst}, v{TR}, v{TR+1}""")
    a.label('L_head_done')
    stamp('c_head')
    PS = (TR, TR + 4, TR + 8)
    a(f'''s_cmp_lg_u32 s3, 0
s_cbranch_scc1 L_c_noq
v_lshlrev_b32 v4, 4, v1
v_lshlrev_b32 v5, 3, v1
s_and_b32 s72, s2, 31
s_lshl_b32 s72, s72, 10
s_add_u32 s72, s72, {WS_Q}''')
    if cfg.qprio is not None: a(f's_setprio {cfg.qprio}')
    if cfg.nohead: a(f's_sleep 127\n' * cfg.qdelay + 'v_mov_b32 v6, 0\nv_mov_b32 v7, 0')
    else: poll_pipe(6, [(4, 's72')], PS[:cfg.qsets], sleep=cfg.qsleep)
    a(f's_setprio {cfg.cprio}')
    a(f'ds_write_b64 v5, v[6:7] offset:{L_Q}')
    lds_inc(L_QF, 0, 2)
    stamp('c_q')
    a.label('L_c_noq')
    a('s_cmp_eq_u32 s83, 1\ns_cbranch_scc1 L_c_nopz')
    a('s_cmp_lg_u32 s3, 3\ns_cbranch_scc1 L_c_nopz')
    a(f'''v_mov_b32 v10, s32
v_mov_b32 v11, s33
s_lshl_b32 s35, s2, 4
s_add_u32 s35, s35, {WS_ARR}
s_cmp_lg_u32 s83, 2
s_cbranch_scc1 L_pz_go
s_bitcmp1_b32 s100, 30
s_cbranch_scc1 L_pz_go''')
    lds_spin(L_GO, 1, 0, 2, sleep=4)
    a(f'''L_pz_go:
s_waitcnt vmcnt(0)
s_mov_b64 exec, 1
buffer_store_dwordx2 v[10:11], v0, s[12:15], s35 offen sc1
s_mov_b64 exec, -1''')
    lds_inc(L_CNTA, 0, 2)
    a.label('L_c_nopz')
    a('s_cmp_lg_u32 s3, 1\ns_cbranch_scc1 L_c_noarr')
    lds_spin(L_QF, 1, 0, 2, sleep=8)
    wait_arrival(TR)
    lds_inc(L_ARR, 0, 2)
    a.label('L_c_noarr')
    a('s_cmp_lg_u32 s3, 0\ns_cbranch_scc1 L_c_mid')
    a(f'''s_and_b32 s72, s2, 31
s_lshl_b32 s72, s72, 8
s_lshr_b32 s73, s2, 5
s_lshl_b32 s73, s73, 5
s_add_u32 s73, s73, s72
s_add_u32 s73, s73, {WS_ML}
v_and_b32 v5, 8, v1
v_lshlrev_b32 v3, 1, v5
v_mov_b32 v10, s32
v_mov_b32 v11, s33
v_and_b32 v12, 15, v1
v_lshlrev_b32 v12, 2, v12''')
    lds_spin(L_CNTL, 8, 0, 2, sleep=4)
    a(f'''ds_read_b32 v8, v12 offset:{L_MW}
ds_read_b32 v9, v12 offset:{L_LW}
s_waitcnt lgkmcnt(0)
v_max_f32_dpp v8, v8, v8 quad_perm:[1,0,3,2] {DPP}
v_add_f32_dpp v9, v9, v9 quad_perm:[1,0,3,2] {DPP}
v_max_f32_dpp v8, v8, v8 quad_perm:[2,3,0,1] {DPP}
v_add_f32_dpp v9, v9, v9 quad_perm:[2,3,0,1] {DPP}
v_max_f32_dpp v8, v8, v8 row_half_mirror {DPP}
v_add_f32_dpp v9, v9, v9 row_half_mirror {DPP}
s_mov_b64 exec, 0x101
buffer_store_dwordx4 v[8:11], v3, s[12:15], s73 offen sc1
s_mov_b64 exec, -1
s_waitcnt vmcnt(0)''')
    stamp('c_ml')
    a.label('L_c_mid')
    a('''s_cmp_eq_u32 s69, 0
s_cbranch_scc1 L_t_none
s_cmp_eq_u32 s69, 2
s_cbranch_scc1 L_t_o''')
    XW = 3
    srd(a, 16, PW1, SZ['w1'])
    def w1_issue(gate=None):
        a(f'''s_mov_b32 s70, 9216
v_lshrrev_b32 v2, 2, v1
v_and_b32 v8, 3, v1
v_lshlrev_b32 v8, 4, v8
v_mul_u32_u24 v3, 9216, v2
v_lshl_add_u32 v4, v3, 3, v8
v_lshl_add_u32 v5, v3, 2, v8
s_lshl_b32 s72, s101, 6
s_mul_i32 s73, s3, {128*9216}
s_add_u32 s73, s73, s72''')
        narrow_issue(16, XW, gate)
    a('s_bitcmp0_b32 s100, 31\ns_cbranch_scc1 L_f_w1e')
    lds_spin(L_CNTK, 8, 0, 2, sleep=8)
    w1_issue()
    a.label('L_f_w1e')
    XW = 3
    PM, PE = 144, 160
    B1R, GBR, B2R, M0 = 13, 14, 15, 12
    srd(a, 28, PX, SZ['x']); srd(a, 20, PB1, SZ['b1']); srd(a, 24, PB2, SZ['b2'])
    G = W2
    a(f"""s_min_u32 s77, s101, 35
s_cmp_ge_u32 s77, 18
s_cselect_b32 s76, 1, 0
s_mul_i32 s72, s76, 18
s_sub_u32 s77, s77, s72
s_cmp_eq_u32 s3, {XW}
s_cselect_b32 s66, 24, 16
s_cselect_b32 s67, 12, 8
v_and_b32 v3, 31, v1
v_mul_u32_u24 v4, s66, v3
v_lshrrev_b32 v6, 5, v1
v_mul_u32_u24 v6, 1152, v6
v_mad_u32_u24 v7, s67, v3, v6
s_lshl_b32 s71, s3, 8
v_lshrrev_b32 v2, 1, v1
v_lshlrev_b32 v2, 1, v2
v_lshlrev_b32 v9, 1, v3
v_lshlrev_b32 v8, 2, v3
s_lshl_b32 s70, s77, 7
s_add_u32 s70, s70, {WS_MOD2 + 1728*4}
s_lshl_b32 s72, s3, 9
s_add_u32 s72, s72, {WS_MOD2}
s_add_u32 s73, s72, 4608
s_lshl_b32 s4, s101, 6
s_lshl_b32 s5, s77, 6""")
    lds_spin(L_ARR, 1, 0, 3, sleep=4)
    a(f"""buffer_load_dwordx4 {vr(G,4)}, v4, s[12:15], s72 offen sc1
buffer_load_dwordx4 {vr(G+4,4)}, v4, s[12:15], s72 offen offset:2304 sc1
buffer_load_dwordx4 {vr(G+8,4)}, v4, s[12:15], s73 offen sc1
buffer_load_dwordx2 {vr(G+12,2)}, v4, s[12:15], s72 offen offset:16 sc1
buffer_load_dwordx2 {vr(G+14,2)}, v4, s[12:15], s72 offen offset:2320 sc1
buffer_load_dwordx2 {vr(G+16,2)}, v4, s[12:15], s73 offen offset:16 sc1
buffer_load_dword v{GBR}, v8, s[12:15], s70 offen sc1
buffer_load_dwordx2 {vr(G+18,2)}, v7, s[28:31], s71 offen
buffer_load_dword v{G+20}, v7, s[28:31], s71 offen offset:8
buffer_load_ushort v{M0}, v6, s[28:31], 0 offen
buffer_load_ushort v{B1R}, v2, s[20:23], s4 offen
buffer_load_ushort v{B2R}, v9, s[24:27], s5 offen
v_lshrrev_b32 v2, 5, v1
v_lshlrev_b32 v6, 5, v2
v_lshlrev_b32 v2, 4, v2
v_sub_u32 v2, 16, v2
s_waitcnt vmcnt(0)""")
    gav = [G + i for i in range(4)] + [G + 12, G + 13]
    sbv = [G + 4 + i for i in range(4)] + [G + 14, G + 15]
    cbv = [G + 8 + i for i in range(4)] + [G + 16, G + 17]
    PXr = [PM + i for i in range(4)] + [PE, PE + 1]
    PGr = [PM + 4 + i for i in range(4)] + [PE + 2, PE + 3]
    PCr = [PM + 8 + i for i in range(4)] + [PE + 4, PE + 5]
    PSr = [PM + 12 + i for i in range(4)] + [PE + 6, PE + 7]
    for src, dst in zip(gav + sbv + cbv, PGr + PSr + PCr):
        a(f'v_lshlrev_b32 v{src}, v2, v{src}\nv_and_b32 v{dst}, 0xffff0000, v{src}')
    for r in PCr: a(f'v_add_f32 v{r}, 1.0, v{r}')
    rnd(PCr, [3, 4, 5])
    unpack(G + 18, PM); unpack(G + 19, PM + 2); unpack(G + 20, PE)
    a(f"""s_lshl_b32 s72, s76, 4
s_sub_u32 s72, 16, s72
v_lshlrev_b32 v{GBR}, s72, v{GBR}
v_and_b32 v{GBR}, 0xffff0000, v{GBR}
v_lshlrev_b32 v{B1R}, 16, v{B1R}
v_lshlrev_b32 v{B2R}, 16, v{B2R}
v_lshlrev_b32 v{M0}, 16, v{M0}
s_mov_b32 exec_lo, 1
s_mov_b32 exec_hi, 1
ds_write_b32 v6, v{M0} offset:{L_STAT+64}
s_mov_b64 exec, -1""")
    srd(a, 24, PW2, SZ['w2'])
    a('s_bitcmp1_b32 s100, 31\ns_cbranch_scc1 L_f_w1d')
    lds_spin(L_PUB, 1, 0, 7, sleep=1)
    w1_issue()
    a.label('L_f_w1d')
    def w2_issue():
        X = a.newlabel('W2X')
        a(f'''v_lshrrev_b32 v2, 4, v1
v_mul_u32_u24 v2, 1152, v2
v_and_b32 v3, 15, v1
v_lshl_add_u32 v2, v3, 4, v2
s_mul_i32 s70, s101, {32*1152}
s_lshl_b32 s71, s3, 8
s_add_u32 s71, s71, s70''')
        for jj in range(8):
            a(f'buffer_load_dwordx4 {vr(W2+4*jj,4)}, v2, s[24:27], s71 offen{NT}')
            if jj < 7: a('s_add_u32 s71, s71, 4608')
        a(f'''s_cmp_lg_u32 s3, 2
s_cbranch_scc1 {X}
s_add_u32 s71, s70, 1024
s_mov_b32 exec_lo, 0x00ff00ff
s_mov_b32 exec_hi, 0x00ff00ff''')
        for jj in range(8):
            a(f'buffer_load_dwordx4 {vr(W2X+4*jj,4)}, v2, s[24:27], s71 offen{NT}')
            if jj < 7: a('s_add_u32 s71, s71, 4608')
        a('s_mov_b64 exec, -1')
        a.label(X)
    lds_spin(L_PUB, 1, 0, 7, sleep=1)
    w2_issue()
    a(f'''s_cmp_eq_u32 s3, {XW}
s_cselect_b32 s66, 24, 16
s_cselect_b32 s67, 12, 8
s_movk_i32 s74, 256
s_cselect_b32 s74, 384, s74
v_lshrrev_b32 v2, 5, v1
v_and_b32 v3, 31, v1
v_mul_u32_u24 v8, s67, v3
v_mul_u32_u24 v4, 1152, v2
v_add_u32 v4, v4, v8
s_lshl_b32 s72, s3, 8
v_add_u32 v4, s72, v4
v_mul_u32_u24 v5, 2304, v2
v_mad_u32_u24 v5, s66, v3, v5
s_lshl_b32 s72, s3, 9
v_add_u32 v5, s72, v5
v_lshlrev_b32 v6, 5, v2
s_lshl_b32 s72, s3, 3
v_add_u32 v6, s72, v6
v_mad_u32_u24 v8, s74, v2, v8
v_and_b32 v3, 1, v1
v_lshlrev_b32 v7, 5, v3
v_mul_u32_u24 v9, s74, v3
v_lshrrev_b32 v2, 2, v1
v_lshl_add_u32 v9, v2, 4, v9
v_lshlrev_b32 v11, 2, v1
s_lshl_b32 s75, s74, 1
s_lshr_b32 s73, s101, 3
s_and_b32 s73, s73, {cfg.x1rep - 1}
s_mul_i32 s73, s73, {X1_RS}
s_mov_b32 s34, 0x00003f80
s_mov_b32 s35, 0x3f800000''')
    narrow_addr(10)
    for r in range(8): a(f's_add_u32 s{4+r}, s73, {WS_X1P + 2304*r}')
    SO = lambda r: f's{4+r}'
    srd(a, 28, POUT, SZ['out'])
    a(f'''s_lshl_b32 s72, s3, 11
s_add_u32 s72, s72, {L_PS}
s_lshl_b32 s73, s3, 10
s_add_u32 s73, s73, {L_AV}
s_cmp_eq_u32 s3, 2
s_cbranch_scc1 L_f_w16
s_waitcnt vmcnt(8)
L_f_w16:
s_waitcnt vmcnt(16)''')
    transpose8(RAW, TR)
    a(f's_cmp_eq_u32 s3, {XW}\ns_cbranch_scc1 L_f_x')
    MR2, AT2, TV, D2 = 150, 154, RAW, RAW + 8
    def f_phase1(x):
        n = 6 if x else 4
        sfx = 'x' if x else 'n'
        if x: transpose4(RAW2, TR2)
        AP = RAW2 if x else PE
        T0 = RAW2 + 6 if x else PE + 4
        a(f'v_add_u32 v{T0}, s72, v8\nv_add_u32 v{T0+1}, s75, v{T0}')
        for (R, va) in ((PCr, T0), (PSr, T0 + 1)):
            a(f'v_cvt_pk_bf16_f32 v2, v{R[0]}, v{R[1]}\nv_cvt_pk_bf16_f32 v3, v{R[2]}, v{R[3]}')
            if x:
                a(f'ds_write2_b32 v{va}, v2, v3 offset0:0 offset1:1')
                a(f'v_cvt_pk_bf16_f32 v{AP}, v{R[4]}, v{R[5]}\nds_write_b32 v{va}, v{AP} offset:8')
            else: a(f'ds_write_b64 v{va}, v[2:3]')
        a(f'''v_bfe_u32 v{T0}, v1, 1, 1
v_mul_u32_u24 v{T0}, s75, v{T0}
v_add3_u32 v{T0}, v{T0}, v9, s72
ds_read_b128 {vr(AP,4)}, v{T0}''')
        if x:
            a(f'''v_lshrrev_b32 v{T0+1}, 2, v1
v_lshlrev_b32 v{T0+1}, 3, v{T0+1}
v_sub_u32 v{T0}, v{T0}, v{T0+1}
ds_read_b64 {vr(AP+4,2)}, v{T0} offset:256''')
        X = PSr[:n]
        for r in X: a(f'v_mov_b32 v{r}, 0')
        a(f'''v_add_u32 v8, s73, v8
v_add_u32 v9, s73, v9''')
        if x: a(f'v_sub_u32 v{T0+1}, v9, v{T0+1}')
        a(f'''v_lshlrev_b32 v{T0}, 1, v10
s_waitcnt lgkmcnt(0)''')
        for e in range(8): a(f'v_mfma_f32_16x16x32_bf16 {vr(RAW+4*e,4)}, {vr(AP,4)}, {vr(TR+4*e,4)}, 0')
        if x:
            for e in range(8): a(f'v_mfma_f32_16x16x16_bf16 {vr(RAW+4*e,4)}, {vr(AP+4,2)}, {vr(TR2+2*e,2)}, {vr(RAW+4*e,4)}')
        a('s_mov_b32 exec_lo, 0x00f0000f\ns_mov_b32 exec_hi, 0xf0000f00')
        for e in range(8): a(f'ds_write_b128 v{T0}, {vr(RAW+4*e,4)} offset:{L_PR+16*e}')
        a('s_mov_b64 exec, -1')
        lds_last(L_CNTP, 4, 0, 2, f'L_f_p{sfx}')
        a(f'''v_lshrrev_b32 v2, 1, v1
v_lshlrev_b32 v2, 4, v2
v_and_b32 v3, 1, v1
v_lshl_add_u32 v2, v3, 2, v2
v_add_u32 v3, 8, v2''')
        for q, va in ((0, 2), (1, 3)):
            for p in range(0, 16, 2): a(f'ds_read2st64_b32 {vr(RAW+16*q+p,2)}, v{va} offset0:{L_PR//256+2*p} offset1:{L_PR//256+2*p+2}')
            a('s_waitcnt lgkmcnt(0)')
        for q in (0, 1):
            B = RAW + 16 * q
            for st in (2, 4, 8):
                for p in range(0, 16, 2 * st): a(f'v_pk_add_f32 {vr(B+p,2)}, {vr(B+p,2)}, {vr(B+p+st,2)}')
        a(f'''v_add_f32 v2, v{RAW}, v{RAW+1}
v_add_f32 v3, v{RAW+16}, v{RAW+17}
v_lshlrev_b32 v{RAW}, 3, v1
ds_write_b64 v{RAW}, v[2:3] offset:{L_PCS}''')
        a.label(f'L_f_p{sfx}')
        if not cfg.pollw2: a('s_waitcnt vmcnt(0)')
        elif cfg.pollw2 > 1: a(f's_waitcnt vmcnt({cfg.pollw2})')
        stamp('t_w')
        nd = n // 2; st = 4 if x else 2
        def acc(k):
            for d in range(nd):
                a(f'v_dot2_f32_bf16 v{X[2*d]}, v{RAW+st*k+d}, s34, v{X[2*d]}')
                a(f'v_dot2_f32_bf16 v{X[2*d+1]}, v{RAW+st*k+d}, s35, v{X[2*d+1]}')
        pend_poll([(RAW + st * r, nd, 4, SO(r), 0) for r in range(8)], cfg.s4sleep, on_ok=acc)
        stamp('t_poll')
        prs = [X[i] for i in range(0, n, 2)]
        T3 = [RAW + 16, RAW + 17, RAW + 18]
        rnd(X, T3)
        for i, p in enumerate(prs): a(f'v_pk_mul_f32 {vr(p,2)}, {vr(p,2)}, {vr(PGr[2*i],2)}')
        rnd(X, T3)
        for i, p in enumerate(prs): a(f'v_pk_add_f32 {vr(p,2)}, {vr(p,2)}, {vr(PXr[2*i],2)}')
        rnd(X, T3)
        D = RAW; U = RAW + 6
        for i, p in enumerate(prs): a(f'v_pk_add_f32 {vr(D+2*i,2)}, {vr(p,2)}, {vr(M0,2)} op_sel_hi:[1,0] neg_lo:[0,1] neg_hi:[0,1]')
        for i, p in enumerate(prs): a(f'v_pk_mul_f32 {vr(U+2*i,2)}, {vr(D+2*i,2)}, {vr(PCr[2*i],2)}')
        a(f'v_cvt_pk_bf16_f32 v2, v{U}, v{U+1}\nv_cvt_pk_bf16_f32 v3, v{U+2}, v{U+3}')
        if x:
            a(f'''v_cvt_pk_bf16_f32 v{U}, v{U+4}, v{U+5}
ds_write2_b32 v8, v2, v3 offset0:0 offset1:1
ds_write_b32 v8, v{U} offset:8''')
        else: a('ds_write_b64 v8, v[2:3]')
        a(f'ds_read_b128 {vr(A,4)}, v9')
        if x: a(f'ds_read_b64 {vr(A2,2)}, v{T0+1} offset:256')
        S1, S2 = RAW + 12, RAW + 14
        a(f'v_pk_add_f32 {vr(S1,2)}, {vr(D,2)}, {vr(D+2,2)}')
        a(f'v_pk_mul_f32 {vr(S2,2)}, {vr(D,2)}, {vr(D,2)}')
        a(f'v_pk_fma_f32 {vr(S2,2)}, {vr(D+2,2)}, {vr(D+2,2)}, {vr(S2,2)}')
        if x:
            a(f'v_pk_add_f32 {vr(S1,2)}, {vr(S1,2)}, {vr(D+4,2)}')
            a(f'v_pk_fma_f32 {vr(S2,2)}, {vr(D+4,2)}, {vr(D+4,2)}, {vr(S2,2)}')
        a(f'v_add_f32 v2, v{S1}, v{S1+1}\nv_add_f32 v3, v{S2}, v{S2+1}')
        half_reduce([2, 3], [S1, S2])
        a(f'''s_mov_b32 exec_lo, 1
s_mov_b32 exec_hi, 1
ds_write_b64 v6, v[2:3] offset:{L_STAT}
s_mov_b64 exec, -1''')
        if x:
            for i in range(3): a(f'ds_write_b64 v5, {vr(X[2*i],2)} offset:{L_X1+8*i}')
        else: a(f'ds_write_b128 v5, {vr(X[0],4)} offset:{L_X1}')
        a(f's_waitcnt lgkmcnt({4 if x else 2})')
        stamp('f_bar1')
        fill = f'''s_lshl_b32 s72, s3, 8
s_add_u32 s72, s72, {L_TD}
v_bfe_u32 v4, v1, 3, 1
v_lshlrev_b32 v4, 7, v4
v_lshrrev_b32 v5, 4, v1
v_lshl_add_u32 v4, v5, 5, v4
v_add_u32 v4, s72, v4
v_and_b32 v5, 1, v1
v_lshlrev_b32 v12, 7, v5
v_lshlrev_b32 v5, 4, v5
v_mov_b32 v6, 0xffff
v_lshlrev_b32 v5, v5, v6
v_bfe_u32 v6, v1, 1, 2
v_lshl_add_u32 v12, v6, 5, v12
v_lshrrev_b32 v2, 3, v1
v_lshl_add_u32 v12, v2, 2, v12
v_add_u32 v12, s72, v12
v_cmp_eq_u32 vcc, 0, v6
v_cmp_eq_u32 s[66:67], 1, v6
v_lshrrev_b32 v9, 5, v1
v_cndmask_b32 v{MR2}, 0, v5, vcc
v_cndmask_b32 v{MR2+1}, 0, v5, s[66:67]
v_cmp_eq_u32 vcc, 2, v6
v_cmp_eq_u32 s[66:67], 3, v6
v_mul_u32_u24 v9, 2304, v9
v_cndmask_b32 v{MR2+2}, 0, v5, vcc
v_cndmask_b32 v{MR2+3}, 0, v5, s[66:67]
v_and_b32 v8, 15, v1
v_lshl_add_u32 v9, v8, 5, v9
v_bfe_u32 v8, v1, 4, 1
v_lshl_add_u32 v9, v8, 4, v9
v_lshlrev_b32 v8, 3, v1'''.split('\n')
        mf = [f'v_mfma_f32_16x16x32_bf16 {vr(RAW+4*e,4)}, {vr(A,4)}, {vr(TR+4*e,4)}, 0' for e in range(8)]
        if x: mf += [f'v_mfma_f32_16x16x16_bf16 {vr(RAW+4*e,4)}, {vr(A2,2)}, {vr(TR2+2*e,2)}, {vr(RAW+4*e,4)}' for e in range(8)]
        per = -(-len(fill) // (len(mf) - 1))
        for i, m in enumerate(mf):
            a(m)
            for l in fill[i * per:(i + 1) * per]: a(l)
    f_phase1(False)
    a('s_branch L_f_j')
    a.label('L_f_x')
    f_phase1(True)
    a.label('L_f_j')
    narrow_write(10)
    a(f'''s_mul_i32 s72, s101, 4608
s_add_u32 s72, s72, {WS_YP}
s_lshl_b32 s73, s3, 9
s_add_u32 s73, s73, s72
s_mov_b32 s74, 0x3ae38e39
s_mov_b32 s75, 0x3ae38e39
s_waitcnt lgkmcnt(0)
s_barrier''')
    stamp('f_bar2')
    Q = RAW + 16
    a(f'''ds_read_b128 {vr(Q,4)}, v7 offset:{L_STAT}
ds_read_b128 {vr(Q+4,4)}, v7 offset:{L_STAT+16}
ds_read_b32 v{Q+8}, v7 offset:{L_STAT+64}
ds_read_b64 {vr(Q+10,2)}, v8 offset:{L_PCS}''')
    for p in range(0, 16, 2): a(f'ds_read2st64_b32 {vr(TR+p,2)}, v11 offset0:{L_RED//256+p} offset1:{L_RED//256+p+1}')
    a(f'''v_mov_b32 v7, v9
s_waitcnt lgkmcnt(9)
v_pk_add_f32 {vr(Q,2)}, {vr(Q,2)}, {vr(Q+2,2)}
v_pk_add_f32 {vr(Q+4,2)}, {vr(Q+4,2)}, {vr(Q+6,2)}
v_pk_add_f32 {vr(Q,2)}, {vr(Q,2)}, {vr(Q+4,2)}
v_pk_mul_f32 {vr(Q,2)}, {vr(Q,2)}, s[74:75]
v_fma_f32 v{Q+1}, -v{Q}, v{Q}, v{Q+1}
v_add_f32 v{Q}, v{Q}, v{Q+8}
v_max_f32 v{Q+1}, 0, v{Q+1}
v_cvt_pk_bf16_f32 v{Q+2}, v{Q}, v{Q+1}
s_waitcnt lgkmcnt(4)
v_pk_add_f32 {vr(TR,2)}, {vr(TR,2)}, {vr(TR+2,2)}
v_and_b32 v{Q+1}, 0xffff0000, v{Q+2}
v_lshlrev_b32 v{Q}, 16, v{Q+2}
v_add_f32 v{Q+1}, 0x3727c5ac, v{Q+1}
v_pk_add_f32 {vr(TR+4,2)}, {vr(TR+4,2)}, {vr(TR+6,2)}
v_cvt_pk_bf16_f32 v{Q+2}, v{Q+1}, v{Q+1}
v_sub_f32 v{Q}, v{Q}, v{Q+8}
v_lshlrev_b32 v{Q+1}, 16, v{Q+2}
v_pk_add_f32 {vr(TR,2)}, {vr(TR,2)}, {vr(TR+4,2)}
v_sqrt_f32 v{Q+1}, v{Q+1}
s_waitcnt lgkmcnt(0)
v_pk_add_f32 {vr(TR+8,2)}, {vr(TR+8,2)}, {vr(TR+10,2)}
v_cvt_pk_bf16_f32 v{Q+2}, v{Q+1}, v{Q+1}
v_pk_add_f32 {vr(TR+12,2)}, {vr(TR+12,2)}, {vr(TR+14,2)}
v_lshlrev_b32 v{Q+1}, 16, v{Q+2}
v_pk_add_f32 {vr(TR+8,2)}, {vr(TR+8,2)}, {vr(TR+12,2)}
v_rcp_f32 v{Q+1}, v{Q+1}
v_pk_add_f32 {vr(TR,2)}, {vr(TR,2)}, {vr(TR+8,2)}
v_add_f32 v3, v{TR}, v{TR+1}
v_fma_f32 v3, -v{Q}, v{Q+10}, v3
v_fma_f32 v3, v3, v{Q+1}, v{Q+11}''')
    rnd([3], 2)
    a(f'v_add_f32 v3, v3, v{B1R}')
    rnd([3], 2)
    a(f'''v_max_f32 v3, 0, v3
v_mul_f32 v3, v3, v3
v_cvt_pk_bf16_f32 v3, v3, v3
ds_write_b32 v12, v3
ds_read_b128 {vr(TV,4)}, v4
ds_read_b128 {vr(TV+4,4)}, v4 offset:16
s_cmp_eq_u32 s3, 2
s_cbranch_scc1 L_f2_x''')
    def f2(extra):
        for jj in range(8):
            at = AT2 + 4 * (jj % 2)
            if jj == 0: a('s_waitcnt lgkmcnt(1) vmcnt(0)')
            if jj == 4: a('s_waitcnt lgkmcnt(0)')
            if jj == 0:
                for r in range(4): a(f'v_and_b32 v{at+r}, v{TV}, v{MR2+r}')
            if jj + 1 < 8:
                if jj + 1 == 4: a('s_waitcnt lgkmcnt(0)')
                for r in range(4): a(f'v_and_b32 v{AT2+4*((jj+1)%2)+r}, v{TV+jj+1}, v{MR2+r}')
            a(f'v_mfma_f32_16x16x32_bf16 {vr(D2,4)}, {vr(at,4)}, {vr(W2+4*jj,4)}, ' + ('0' if jj == 0 else vr(D2, 4)))
            if extra: a(f'v_mfma_f32_16x16x32_bf16 {vr(D2+4,4)}, {vr(at,4)}, {vr(W2X+4*jj,4)}, ' + ('0' if jj == 0 else vr(D2 + 4, 4)))
        a(f'''v_lshrrev_b32 v2, 3, v1
v_mul_u32_u24 v2, 4608, v2
v_and_b32 v3, 7, v1
v_lshl_add_u32 v2, v3, 4, v2
s_lshl_b32 s74, s101, 7''')
        a(f'buffer_store_dwordx4 {vr(D2,4)}, v7, s[12:15], s73 offen sc1')
        if extra:
            a(f'''s_mov_b32 exec_lo, 0x00ff00ff
s_mov_b32 exec_hi, 0x00ff00ff
buffer_store_dwordx4 {vr(D2+4,4)}, v7, s[12:15], s72 offen offset:2048 sc1
s_mov_b64 exec, -1''')
    f2(False)
    a('s_branch L_f2_d')
    a.label('L_f2_x')
    f2(True)
    a.label('L_f2_d')
    stamp('t_pub')
    a(f'''s_cmp_ge_u32 s101, 36
s_cbranch_scc1 L_fin_end
s_mul_i32 s73, s3, {8*4608}
s_add_u32 s73, s73, s74
s_add_u32 s4, s73, {WS_YP}
s_add_u32 s5, s4, {32*4608}
s_add_u32 s6, s5, {32*4608}
s_add_u32 s7, s6, {32*4608}
s_add_u32 s8, s7, {32*4608}
v_lshrrev_b32 v8, 4, v1
v_lshlrev_b32 v8, 7, v8
v_lshl_add_u32 v8, v3, 4, v8
s_lshl_b32 s75, s3, 9
v_add_u32 v8, s75, v8
v_and_b32 v9, 31, v1
v_lshlrev_b32 v10, 2, v9
v_add_u32 v11, s74, v10
v_lshlrev_b32 v9, 1, v9
s_lshr_b32 s74, s74, 1
ds_read_b32 v12, v11 offset:{L_X1}
s_sleep {cfg.s5first}
s_cmp_lt_u32 s3, 2
s_cbranch_scc1 L_fin_x''')
    FA = RAW + 16
    def fin_poll(m):
        L = a.newlabel('FP'); E = a.newlabel('FPE')
        n = cfg.s5sets
        sets = [80 + 20 * i for i in range(n)]
        def ld(r):
            for k in range(m): a(f'buffer_load_dwordx4 {vr(r+4*k,4)}, v2, s[12:15], s{4+k} offen sc1')
        a('s_mov_b32 s80, 0')
        for i, r in enumerate(sets):
            ld(r)
            if i + 1 < n: a(f's_sleep {cfg.s5gap}')
        a.label(L)
        for i, r in enumerate(sets):
            for k in range(1, m):
                a(f's_waitcnt vmcnt({(n-1)*m + m - 1 - k})')
                for h in (0, 2): a(f'v_pk_add_f32 {vr(FA+h,2)}, {vr((r if k == 1 else FA)+h,2)}, {vr(r+4*k+h,2)}')
            a(f'''v_cmp_u_f32 s[66:67], v{FA}, v{FA+1}
v_cmp_u_f32 vcc, v{FA+2}, v{FA+3}
s_or_b64 s[66:67], s[66:67], vcc
s_cbranch_scc0 {E}''')
            if n == 1: a(f's_sleep {cfg.s5sleep}')
            ld(r)
        a(f'''s_add_u32 s80, s80, 1
s_cmp_gt_u32 s80, {SPIN_LIMIT}
s_cbranch_scc0 {L}''')
        a.label(E)
    fin_poll(4)
    a('s_branch L_fin_d')
    a.label('L_fin_x')
    fin_poll(5)
    a.label('L_fin_d')
    stamp('f_s5')
    for r in range(4): a(f'v_add_f32_dpp v{FA+r}, v{FA+r}, v{FA+r} row_ror:8 {DPP}')
    a(f'''s_mov_b32 exec_lo, 0x00ff00ff
s_mov_b32 exec_hi, 0x00ff00ff
ds_write_b128 v8, {vr(FA,4)} offset:{L_RED}
s_mov_b64 exec, -1''')
    lds_last(L_CNTF, 4, 0, 2, 'L_fin_end')
    for p in range(16): a(f'ds_read_b32 v{TR+p}, v10 offset:{L_RED+128*p}')
    for p in range(0, 16, 4):
        a(f's_waitcnt lgkmcnt({12-p})')
        a(f'v_pk_add_f32 {vr(TR+p,2)}, {vr(TR+p,2)}, {vr(TR+p+2,2)}')
    a(f'''v_pk_add_f32 {vr(TR,2)}, {vr(TR,2)}, {vr(TR+4,2)}
v_pk_add_f32 {vr(TR+8,2)}, {vr(TR+8,2)}, {vr(TR+12,2)}
v_pk_add_f32 {vr(TR,2)}, {vr(TR,2)}, {vr(TR+8,2)}
v_add_f32 v{TR}, v{TR}, v{TR+1}''')
    rnd([TR], 2)
    a(f'v_add_f32 v{TR}, v{TR}, v{B2R}')
    rnd([TR], 2)
    a(f'v_mul_f32 v{TR}, v{TR}, v{GBR}')
    rnd([TR], 2)
    a(f'''v_add_f32 v{TR}, v{TR}, v12
v_cvt_pk_bf16_f32 v6, v{TR}, v{TR}
s_mov_b32 exec_hi, 0
buffer_store_short v6, v9, s[28:31], s74 offen
s_mov_b64 exec, -1
s_cmp_lg_u32 s101, 0
s_cbranch_scc1 L_fin_end
v_mov_b32 v8, s32
v_mov_b32 v9, s33
s_mov_b32 s70, {WS_EP}
s_mov_b64 exec, 1
buffer_store_dwordx2 v[8:9], v0, s[12:15], s70 offen sc1
s_mov_b64 exec, -1''')
    a.label('L_fin_end')
    chain_end()

    a.label('L_t_o')
    RA, RB, TA, TB = 16, 80, 48, 112
    srd(a, 20, PWO, SZ['wo'])
    a(f'''s_mov_b32 s71, s101
s_mul_i32 s76, s71, 57
s_lshr_b32 s76, s76, 9
s_mul_i32 s73, s76, 9
s_sub_u32 s77, s71, s73
v_lshrrev_b32 v2, 3, v1
v_mul_u32_u24 v2, {8*1152}, v2
v_and_b32 v3, 7, v1
v_lshl_add_u32 v2, v3, 4, v2
s_lshl_b32 s72, s76, 9
s_lshl_b32 s73, s3, 7
s_add_u32 s72, s72, s73
s_mul_i32 s72, s72, 1152
s_lshl_b32 s73, s77, 7
s_add_u32 s72, s72, s73''')
    if cfg.touch:
        a(f'''s_mov_b64 exec, 1
buffer_load_dword v{RA}, v0, s[20:23], s72 offen
s_mov_b64 exec, -1''')
    a(f'''v_lshrrev_b32 v12, 5, v1
v_lshlrev_b32 v12, 12, v12
v_and_b32 v3, 7, v1
v_lshl_add_u32 v12, v3, 5, v12
s_lshl_b32 s68, s76, 1
s_lshr_b32 s71, s3, 1
s_add_u32 s68, s68, s71
s_lshl_b32 s68, s68, 8
s_and_b32 s71, s3, 1
s_lshl_b32 s71, s71, 4
s_add_u32 s68, s68, s71
s_add_u32 s68, s68, {WS_ML}
s_nop 0''')
    lds_spin({'A': L_CNTA, 'V': L_CNTV, 'K': L_CNTK}[cfg.wo_at], 9 if cfg.wo_at == 'A' else 8, 0, 3, sleep=2)
    ML = 160
    a(f'buffer_load_dwordx4 {vr(ML,4)}, v12, s[12:15], s68 offen sc1')
    for blk, R in ((0, RA), (1, RB)):
        for j in range(8):
            o = (64 * blk + j) * 1152
            a(f's_add_u32 s73, s72, {o & ~0xfff}')
            a(f'buffer_load_dwordx4 {vr(R+4*j,4)}, v2, s[20:23], s73 offen offset:{o & 0xfff}{NT}')
    a(f'''v_lshrrev_b32 v4, 5, v1
v_lshlrev_b32 v4, 17, v4
v_and_b32 v3, 31, v1
v_lshl_add_u32 v4, v3, 4, v4
s_lshl_b32 s72, s76, 1
s_lshr_b32 s73, s3, 1
s_add_u32 s72, s72, s73
s_lshl_b32 s72, s72, 13
s_and_b32 s73, s3, 1
s_lshl_b32 s73, s73, 9
s_add_u32 s72, s72, s73
s_add_u32 s72, s72, {WS_OP}
s_add_u32 s73, s72, 4096
s_lshl_b32 s74, s3, 10
s_add_u32 s75, s74, {L_AV}
v_lshlrev_b32 v8, 3, v1
v_add_u32 v5, s75, v8
v_lshrrev_b32 v6, 4, v1
v_bfe_u32 v3, v1, 2, 1
v_lshl_add_u32 v6, v6, 1, v3
v_and_b32 v3, 1, v1
v_lshlrev_b32 v3, 8, v3
v_lshl_add_u32 v6, v6, 4, v3
v_add_u32 v6, s75, v6
v_and_b32 v7, 7, v1
v_lshlrev_b32 v7, 5, v7
v_lshrrev_b32 v3, 4, v1
v_lshl_add_u32 v7, v3, 9, v7
s_add_u32 s74, s74, {L_RED}
v_add_u32 v7, s74, v7
v_and_b32 v9, 31, v1
v_lshlrev_b32 v9, 2, v9
v_lshrrev_b32 v3, 5, v1
v_mul_u32_u24 v3, 1152, v3
v_add_u32 v9, v9, v3
s_mul_i32 s74, s76, 2304
s_lshl_b32 s75, s77, 7
s_add_u32 s74, s74, s75
s_add_u32 s74, s74, {WS_X1P}''')
    lds_spin(L_ARR, 1, 0, 3)
    FS = 152
    OPD = TA if cfg.opre else RA
    WA = RA if cfg.opre else TA
    def o_prep(extra):
        a(f's_waitcnt vmcnt({8 + extra})')
        if cfg.opre: tr8(RA, 2, 3)
        else: transpose8(RA, TA)
        a(f's_waitcnt vmcnt({extra})')
        stamp('t_w')
        transpose8(RB, TB)
        a(f'v_cmp_ne_u64 vcc, s[32:33], {vr(ML+2,2)}\ns_cbranch_vccz L_o_ml')
        tpoll([(ML, 12, 's68', 0)], sleep=4)
        a.label('L_o_ml')
        a('s_mov_b32 s82, 0x3fb8aa3b')
        a(f'''v_max_f32_dpp v10, v{ML}, v{ML} quad_perm:[1,0,3,2] {DPP}
v_max_f32_dpp v10, v10, v10 quad_perm:[2,3,0,1] {DPP}
v_max_f32_dpp v10, v10, v10 row_half_mirror {DPP}
v_sub_f32 v10, v{ML}, v10
v_mul_f32 v10, s82, v10
v_exp_f32 v10, v10
v_mul_f32 v11, v10, v{ML+1}
v_add_f32_dpp v11, v11, v11 quad_perm:[1,0,3,2] {DPP}
v_add_f32_dpp v11, v11, v11 quad_perm:[2,3,0,1] {DPP}
v_add_f32_dpp v11, v11, v11 row_half_mirror {DPP}
v_rcp_f32 v11, v11
v_mul_f32 v10, v10, v11''')
        for sp in range(8): a(f'v_mov_b32_dpp v{FS+sp}, v10 row_newbcast:{sp} {DPP}')
        stamp('f_bar1')
    OPL = [(OPD + 4 * sp, 4, 4, 's72' if sp < 4 else 's73', (sp % 4) * 1024) for sp in range(8)]
    if cfg.opre:
        lds_spin(L_PUB, 1, 0, 3, sleep=2)
        pend_poll(OPL, cfg.s3sleep, pre=lambda: o_prep(8))
    else:
        o_prep(0)
        lds_spin(L_PUB, 1, 0, 3, sleep=2)
        pend_poll(OPL, cfg.s3sleep)
    for sp in range(8):
        sel = 'op_sel_hi:[1,0,1]' if sp % 2 == 0 else 'op_sel:[0,1,0] op_sel_hi:[1,1,1]'
        fp = vr(FS + sp - sp % 2, 2)
        acc = OPD + 4 * (sp % 2)
        for h in (0, 2):
            if sp < 2: a(f'v_pk_mul_f32 {vr(OPD+4*sp+h,2)}, {vr(OPD+4*sp+h,2)}, {fp} ' + ('op_sel_hi:[1,0]' if sp % 2 == 0 else 'op_sel:[0,1] op_sel_hi:[1,1]'))
            else: a(f'v_pk_fma_f32 {vr(acc+h,2)}, {vr(OPD+4*sp+h,2)}, {fp}, {vr(acc+h,2)} {sel}')
    a(f'''v_pk_add_f32 {vr(OPD,2)}, {vr(OPD,2)}, {vr(OPD+4,2)}
v_pk_add_f32 {vr(OPD+2,2)}, {vr(OPD+2,2)}, {vr(OPD+6,2)}''')
    stamp('t_poll')
    a(f'''v_cvt_pk_bf16_f32 v2, v{OPD}, v{OPD+1}
v_cvt_pk_bf16_f32 v3, v{OPD+2}, v{OPD+3}
ds_write_b64 v5, v[2:3]
ds_read_b128 {vr(A,4)}, v6
ds_read_b128 {vr(A+4,4)}, v6 offset:128
s_waitcnt lgkmcnt(1)''')
    for e in range(8): a(f'v_mfma_f32_16x16x32_bf16 {vr(RB+4*e,4)}, {vr(A,4)}, {vr(WA+4*e,4)}, 0')
    a('s_waitcnt lgkmcnt(0)')
    for e in range(8): a(f'v_mfma_f32_16x16x32_bf16 {vr(RB+4*e,4)}, {vr(A+4,4)}, {vr(TB+4*e,4)}, {vr(RB+4*e,4)}')
    a('s_mov_b32 exec_lo, 0xff0000ff\ns_mov_b32 exec_hi, 0')
    for e in range(0, 8, 2):
        for b in (0, 1): a(f'ds_write2_b32 v7, v{RB+4*e+b}, v{RB+4*e+4+b} offset0:{64*b+e} offset1:{64*b+e+1}')
    a('s_mov_b64 exec, -1')
    lds_last(L_CNTO, 4, 0, 2, 'L_o_end')
    for p in range(8): a(f'ds_read_b64 {vr(TA+2*p,2)}, v8 offset:{L_RED+512*p}')
    for p in range(0, 8, 2):
        a(f's_waitcnt lgkmcnt({6-p})')
        a(f'v_pk_add_f32 {vr(TA+2*p,2)}, {vr(TA+2*p,2)}, {vr(TA+2*p+2,2)}')
    a(f'''v_pk_add_f32 {vr(TA,2)}, {vr(TA,2)}, {vr(TA+4,2)}
v_pk_add_f32 {vr(TA+8,2)}, {vr(TA+8,2)}, {vr(TA+12,2)}
v_pk_add_f32 {vr(TA,2)}, {vr(TA,2)}, {vr(TA+8,2)}
v_cvt_pk_bf16_f32 v{TA}, v{TA}, v{TA+1}''')
    for r in range(cfg.x1rep):
        a(f'buffer_store_dword v{TA}, v9, s[12:15], s74 offen sc1')
        if r + 1 < cfg.x1rep: a(f's_add_u32 s74, s74, {X1_RS}')
    stamp('t_pub')
    if cfg.stamps and not cfg.allw:
        a(f'''s_memrealtime s[26:27]
s_waitcnt lgkmcnt(0)
v_mov_b32 v4, s26
s_lshl_b32 s78, s2, 6
s_add_u32 s78, s78, {WS_ST + 0x10004}
v_mov_b32 v5, s78
s_mov_b64 exec, 1
buffer_store_dword v4, v5, s[12:15], 0 offen
s_mov_b64 exec, -1''')
    a.label('L_o_end')
    a.label('L_t_none')
    chain_end()

    a.label('L_stream')
    stamp('s_in')
    SL = lambda k: 26 + 4 * k
    NL = 16
    NOPT = NMAX - NCOM
    VD = lambda p: SL(p - NL)
    VR = lambda p: SL(19 + p % 12)
    MR, AT, OA = SL(31), SL(32), SL(34)
    OS = 16
    a(f"""s_setprio 1
s_sub_u32 s3, s3, 4
v_and_b32 v2, 3, v1
v_lshlrev_b32 v2, 4, v2
v_bfe_u32 v3, v1, 2, 2
v_lshl_add_u32 v2, v3, 8, v2
v_lshrrev_b32 v3, 4, v1
v_lshl_add_u32 v2, v3, 6, v2
v_lshlrev_b32 v3, 4, v1
v_and_b32 v18, 3, v1
v_lshlrev_b32 v18, 4, v18
v_bfe_u32 v17, v1, 2, 1
v_lshl_add_u32 v18, v17, 8, v18
v_lshrrev_b32 v17, 4, v1
v_lshl_add_u32 v18, v17, 6, v18
s_and_b32 s34, s2, 31
s_lshl_b32 s70, s34, 21
s_lshl_b32 s34, s34, 3
s_lshr_b32 s35, s2, 5
s_add_u32 s34, s34, s35
s_lshl_b32 s34, s34, 10
s_add_u32 s34, s34, {WS_OP}
s_lshl_b32 s35, s3, 14
s_add_u32 s35, s35, {L_V}
s_waitcnt lgkmcnt(0)
s_and_b32 s71, s100, 0xff
s_lshl_b32 s71, s71, 13
s_add_u32 s70, s70, s71
s_bfe_u32 s25, s100, 0x40008
s_lshl_b32 s71, s3, 10
s_add_u32 s70, s70, s71""")
    srd(a, 4, PK, SZ['k']); srd(a, 8, PV, SZ['v']); srd(a, 12, PWS, SZ['ws'])
    def off(p):
        if p >= NCOM: return f's{OS+p-NCOM}'
        a(f's_add_u32 s71, s70, {p*8192}')
        return 's71'
    def dep(d=None):
        d = cfg.depth if d is None else d
        if d: a(f's_waitcnt vmcnt({d-1})')
    def kload(p): a(f'buffer_load_dwordx4 {vr(SL(p),4)}, v2, s[4:7], {off(p)} offen{NT}')
    def vload(p): a(f'buffer_load_dwordx4 {vr(VD(p),4)}, v3, s[8:11], {off(p)} offen{NT}')
    def vdma(p):
        a(f's_add_u32 m0, s35, {p * 1024}')
        a(f'buffer_load_dwordx4 v3, s[8:11], {off(p)} offen{NT} lds')
    posm = [0x11111111, 0x22222222, 0x44444444, 0x88888888]
    def opt_setup():
        for o in range(NOPT):
            a(f"""s_add_u32 s{OS+o}, s70, {(NCOM+o)*8192}
s_cmp_gt_u32 s25, {o}
s_cselect_b32 s{OS+o}, s{OS+o}, 0x80000000
s_cselect_b32 s{40+2*o}, {posm[(NCOM+o)%4]}, 0
s_mov_b32 s{41+2*o}, s{40+2*o}""")
        for i, m in enumerate(posm): a(f's_mov_b32 s{58+2*i}, {m}\ns_mov_b32 s{59+2*i}, {m}')
        for r in (14, 15, 16): a(f'v_mov_b32 v{r}, 0xff800000')
    if cfg.crit_d:
        a('s_bitcmp1_b32 s100, 30\ns_cbranch_scc1 L_kslow')
    for p in range(NMAX):
        if p == 4: opt_setup()
        a.label(f'L_kf{p}')
        if p >= cfg.depth: dep()
        if p == 0: stamp('s_k0')
        if p == cfg.depth: stamp('s_k1')
        if p == 12: stamp('s_k12')
        kload(p)
    a.label(f'L_kf{NMAX}')
    lds_inc(L_CNTK, 0, 17)
    stamp('s_issued')
    a('s_setprio 0')
    if cfg.kgate: lds_spin(L_CNTK, 8, 0, 17, sleep=4)
    NG = NL // 4
    for g in range(NG):
        if g < cfg.pre_g:
            for p in range(4 * g, 4 + 4 * g): vdma(p)
            continue
        a(f"""ds_read_b32 v17, v0 offset:{L_QF}
s_waitcnt lgkmcnt(0)
v_readfirstlane_b32 s81, v17
s_mov_b32 s79, {g}
s_cmp_lg_u32 s81, 0
s_cbranch_scc1 L_qk_w{g}""")
        for p in range(4 * g, 4 + 4 * g): dep(); vdma(p)
    lds_spin(L_QF, 1, 0, 17)
    a(f's_mov_b32 s79, {NG}\ns_waitcnt vmcnt({NL})\ns_branch L_qk')
    for g in range(cfg.pre_g, NG):
        a.label(f'L_qk_w{g}')
        a(f's_waitcnt vmcnt({4 * g})')
        if g + 1 < NG: a('s_branch L_qk')
    a.label('L_qk')
    a(f's_setprio 1\nds_read_b128 v[4:7], v18 offset:{L_Q}\ns_waitcnt lgkmcnt(0)')
    stamp('s_q')
    def qk_post(p):
        D = 18 + 4 * (p % 2); i, c = p // 4, p % 4
        direct = c == 0 and i < NCOM // 4
        T = 8 + i if direct else 1
        a(f'v_mov_b32_dpp v{T}, v{D} quad_perm:[0,0,0,0] {DPP}')
        for t in (1, 2, 3): a(f'v_add_f32_dpp v{T}, v{D+t}, v{T} quad_perm:[{t},{t},{t},{t}] {DPP}')
        if not direct:
            m = f's[{58+2*c}:{59+2*c}]' if p < NCOM else f's[{40+2*(p-NCOM)}:{41+2*(p-NCOM)}]'
            a(f'v_cndmask_b32 v{8+i}, v{8+i}, v1, {m}')
    a('v_mov_b32 v0, v1')
    for p in range(NMAX):
        a(f'v_mfma_f32_16x16x32_bf16 {vr(18+4*(p%2),4)}, {vr(SL(p),4)}, v[4:7], 0')
        if p: qk_post(p - 1)
    qk_post(NMAX - 1)
    S = list(range(8, 17))
    if not cfg.noround: rnd(S, [18, 19, 20, 21, 22])
    a('s_mov_b32 s82, 0x3db504f3')
    for r in S: a(f'v_mul_f32 v{r}, s82, v{r}')
    if not cfg.noround: rnd(S, [18, 19, 20, 21, 22])
    a(f"""v_max3_f32 v18, v8, v9, v10
v_max3_f32 v19, v11, v12, v13
v_max3_f32 v20, v14, v15, v16
v_max3_f32 v18, v18, v19, v20
v_max_f32_dpp v18, v18, v18 quad_perm:[1,0,3,2] {DPP}
v_max_f32_dpp v18, v18, v18 quad_perm:[2,3,0,1] {DPP}
v_mov_b32 v19, v18
v_permlane16_swap_b32 v18, v19
v_max_f32 v18, v18, v19
v_mov_b32 v19, v18
v_permlane32_swap_b32 v18, v19
v_max_f32 v18, v18, v19
s_mov_b32 s83, 0x3fb8aa3b
v_lshlrev_b32 v24, 3, v0
s_lshl_b32 s81, s3, 2
v_add_u32 v24, s81, v24
v_mov_b32 v1, 0
s_mov_b64 exec, 0x11
ds_write_b32 v24, v18 offset:{L_MW}
s_mov_b64 exec, -1""")
    lds_inc(L_CNTA, 1, 17)
    stamp('s_qk')
    a(f"""v_and_b32 v18, 3, v0
v_bfe_u32 v19, v0, 3, 1
v_lshl_add_u32 v18, v19, 2, v18
v_and_b32 v19, 1, v18
v_lshlrev_b32 v19, 4, v19
v_mov_b32 v17, 0xffff
v_lshlrev_b32 v19, v19, v17
v_lshrrev_b32 v18, 1, v18""")
    for r in range(4):
        a(f'v_cmp_eq_u32 vcc, {r}, v18\nv_cndmask_b32 v{MR+r}, 0, v19, vcc')
    a(f"""v_bfe_u32 v18, v0, 2, 1
v_lshlrev_b32 v18, 5, v18
v_and_b32 v20, 15, v0
v_lshlrev_b32 v20, 5, v20
v_bfe_u32 v19, v0, 4, 1
v_lshl_add_u32 v20, v19, 9, v20
v_lshrrev_b32 v19, 5, v0
v_lshl_add_u32 v20, v19, 4, v20
s_lshl_b32 s81, s3, 10
v_add_u32 v20, s81, v20
v_add_u32 v21, s35, v3""")
    def young_prio(lo, hi):
        X = a.newlabel('YP')
        a(f's_setprio {lo}\ns_cmp_lt_u32 s3, 4\ns_cbranch_scc1 {X}\ns_setprio {hi}')
        a.label(X)
    vp = cfg.vprio
    if vp is None: a('s_setprio 0')
    elif vp[0] == 'young': young_prio(vp[1], vp[2])
    elif vp[0] == 'prog': a('s_setprio 2')
    elif vp[0] == 'mix': young_prio(1, 2)
    def vpr(i):
        if vp is None: return
        if vp[0] == 'prog':
            if i == vp[1]: a('s_setprio 1')
            if i == vp[2]: a('s_setprio 0')
        if vp[0] == 'mix':
            if i == vp[1]: a('s_setprio 1')
            if i == vp[2]: young_prio(0, 1)
    for g in range(cfg.pre_g, NG):
        a(f's_cmp_gt_u32 s79, {g}\ns_cbranch_scc1 L_dma{g}')
        for p in range(4 * g, 4 + 4 * g): dep(cfg.vdepth); vdma(p)
        a.label(f'L_dma{g}')
    vorder = list(range(NCOM, NMAX)) + list(range(NL, NCOM))
    for i, p in enumerate(vorder[:cfg.vfirst]): vpr(i); dep(cfg.vdepth); vload(p)
    lds_spin(L_CNTA, 9, 1, 17)
    a(f"""ds_read_b128 {vr(AT,4)}, v18 offset:{L_MW}
ds_read_b128 {vr(AT+4,4)}, v18 offset:{L_MW+16}
s_waitcnt lgkmcnt(0)
v_max3_f32 v18, v{AT}, v{AT+1}, v{AT+2}
v_max3_f32 v19, v{AT+3}, v{AT+4}, v{AT+5}
v_max3_f32 v18, v18, v{AT+6}, v{AT+7}
v_max_f32 v18, v18, v19""")
    stamp('s_ml')
    for r in S: a(f'v_sub_f32 v{r}, v{r}, v18')
    for r in S: a(f'v_mul_f32 v{r}, s83, v{r}')
    for r in S: a(f'v_exp_f32 v{r}, v{r}')
    a(f"""v_pk_add_f32 v[18:19], v[8:9], v[10:11]
v_pk_add_f32 v[22:23], v[12:13], v[14:15]
v_pk_add_f32 v[18:19], v[18:19], v[22:23]
v_add_f32 v19, v18, v19
v_add_f32 v19, v19, v16""")
    for r in S: a(f'v_cvt_pk_bf16_f32 v{r}, v{r}, v{r}')
    a(f"""v_add_f32_dpp v19, v19, v19 quad_perm:[1,0,3,2] {DPP}
v_add_f32_dpp v19, v19, v19 quad_perm:[2,3,0,1] {DPP}
v_mov_b32 v18, v19
v_permlane16_swap_b32 v19, v18
v_add_f32 v19, v19, v18
v_mov_b32 v18, v19
v_permlane32_swap_b32 v19, v18
v_add_f32 v19, v19, v18
s_mov_b64 exec, 0x11
ds_write_b32 v24, v19 offset:{L_LW}
s_mov_b64 exec, -1""")
    lds_inc(L_CNTL, 1, 17)
    for i, p in enumerate(vorder[cfg.vfirst:]): vpr(i + cfg.vfirst); dep(cfg.vdepth); vload(p)
    lds_inc(L_CNTV, 1, 17)
    stamp('s_vissued')
    a(f's_waitcnt vmcnt({NMAX - NL})')
    for p in range(12): a(f'ds_read_b128 {vr(VR(p),4)}, v21 offset:{p*1024}')
    order = list(range(NL)) + vorder
    def abuild(k):
        p = order[k]; i, c = p // 4, p % 4
        for r in range(4):
            a(f'v_and_b32_dpp v{AT+4*(k%2)+r}, v{8+i}, v{MR+r} quad_perm:[{c},{c},{c},{c}] {DPP}')
    abuild(0)
    for k, p in enumerate(order):
        if k + 1 < NMAX: abuild(k + 1)
        if p >= NL: a(f's_waitcnt vmcnt({NMAX - 1 - k})')
        elif p < 4: a(f's_waitcnt lgkmcnt({11 - p + p})' if False else f's_waitcnt lgkmcnt({11})' if False else f's_waitcnt lgkmcnt({11 - p + min(p, 4)})')
        elif p < 12: a(f's_waitcnt lgkmcnt({15 - p})')
        else: a(f's_waitcnt lgkmcnt({15 - p})')
        a(f'v_mfma_f32_16x16x32_bf16 {vr(OA,4)}, {vr(AT+4*(k%2),4)}, {vr(VR(p) if p < NL else VD(p),4)}, ' + ('0' if k == 0 else vr(OA, 4)))
        if p < 4: a(f'ds_read_b128 {vr(VR(12+p),4)}, v21 offset:{(12+p)*1024}')
    a(f'ds_write_b128 v20, {vr(OA,4)} offset:{L_OPL}')
    stamp('s_end')
    lds_last(L_CNTB, 8, 1, 17, 'L_s_end')
    R0 = SL(0)
    for w in range(8): a(f'ds_read_b128 {vr(R0+4*w,4)}, v3 offset:{L_OPL+1024*w}')
    for w in range(0, 8, 2):
        a(f's_waitcnt lgkmcnt({6-w})')
        for h in (0, 2): a(f'v_pk_add_f32 {vr(R0+4*w+h,2)}, {vr(R0+4*w+h,2)}, {vr(R0+4+4*w+h,2)}')
    for st in (2, 4):
        for w in range(0, 8, 2 * st):
            for h in (0, 2): a(f'v_pk_add_f32 {vr(R0+4*w+h,2)}, {vr(R0+4*w+h,2)}, {vr(R0+4*(w+st)+h,2)}')
    a(f'buffer_store_dwordx4 {vr(R0,4)}, v3, s[12:15], s34 offen sc1')
    lds_inc(L_PUB, 1, 17)
    if cfg.stamps and not cfg.allw:
        a(f'''s_memrealtime s[26:27]
s_waitcnt lgkmcnt(0)
v_mov_b32 v4, s26
s_lshl_b32 s78, s2, 6
s_add_u32 s78, s78, {WS_ST + 0x10000}
v_mov_b32 v5, s78
s_mov_b64 exec, 1
buffer_store_dword v4, v5, s[12:15], 0 offen
s_mov_b64 exec, -1''')
    a.label('L_s_end')
    stamp('s_pub')
    if cfg.allw:
        i, j = cfg.allw
        a(f'''s_waitcnt lgkmcnt(0)
v_mov_b32 v2, s{84+2*i}
v_mov_b32 v3, s{84+2*j}
s_lshl_b32 s78, s2, 6
s_lshl_b32 s79, s3, 3
s_add_u32 s78, s78, s79
s_add_u32 s78, s78, {WS_ST}
v_mov_b32 v10, s78
s_mov_b64 exec, 1
buffer_store_dwordx2 v[2:3], v10, s[12:15], 0 offen''')
    elif cfg.stamps:
        a(f's_cmp_lg_u32 s3, {cfg.stwave}\ns_cbranch_scc1 L_end')
        store_stamps(1)
    if cfg.crit_d:
        a('s_endpgm')
        a.label('L_kslow')
        opt_setup()
        for p in range(NMAX):
            if p >= cfg.crit_d: a(f's_waitcnt vmcnt({cfg.crit_d-1})')
            if p >= 4:
                a(f'''ds_read_b32 v17, v0 offset:{L_REL}
s_waitcnt lgkmcnt(0)
v_readfirstlane_b32 s81, v17
s_cmp_lg_u32 s81, 0
s_cbranch_scc1 L_kf{p}''')
            kload(p)
        a(f's_branch L_kf{NMAX}')
    a.label('L_end')
    a('s_endpgm')
    a.items.append(('c', '.p2align 2'))
    a.label('L_table')
    tab = role_table(cfg)
    for i in range(0, 256, 8): a.items.append(('c', '.long ' + ', '.join(f'0x{t:08x}' for t in tab[i:i+8])))
    open(fname, 'w').write(build_file([(kn, a, 168, 102, None)], [(None, 256, 768, LDS_BYTES)]))

SS = dict(s_issued=1, s_q=2, s_qk=3, s_vissued=4, s_ml=5, s_end=6, s_pub=7)
HEAD = dict(start=0, c_karg=1, c_bar=2, c_w=3, c_mod=4, c_head=5, c_q=6, c_ml=7, **SS)
TAIL = dict(start=0, t_w=1, t_poll=2, f_bar1=3, f_bar2=4, t_pub=5, f_s5=6, c_end=7, **SS)
def mk(fname, **kw):
    c = Cfg()
    for k, v in kw.items(): setattr(c, k, v)
    gen(c, fname)

EARLY = dict(start=0, c_karg=1, c_bar=2, c_w=3, c_mod=4, c_head=5, c_q=6, c_end=7, s_in=1, s_k0=2, s_k1=3, s_k12=4, s_issued=5, s_q=6, s_end=7)
if __name__ == '__main__':
    PF = 27136
    mk('f29.s', codepf=PF)
    mk('f29_p.s', codepf=PF, pollw2=True)
    mk('f29_p4.s', codepf=PF, pollw2=4)
    mk('f29_p2.s', codepf=PF, pollw2=2)
    mk('f29_o.s', codepf=PF, opre=True)
    for F in (1.5, 2.5):
        D = dict(Cfg.debt); D['F'] = F
        mk(f'f29_d{int(F*10)}.s', codepf=PF, debt=D)
    for c in (0, 3):
        mk(f'f29_t{c}.s', stamps=TAIL, ctwave=c, stwave=7, codepf=PF)
        mk(f'f29_pt{c}.s', stamps=TAIL, ctwave=c, stwave=7, codepf=PF, pollw2=True)
```
